```python
import torch

def _softmax(x, axis=-1):
    return torch.softmax(x, dim=axis)
def _gelu(x):
    return torch.nn.functional.gelu(x, approximate="tanh")
def _silu(x):
    return torch.nn.functional.silu(x)
def _sigmoid(x):
    return torch.sigmoid(x)
def _layernorm(x, axis=-1, eps=1e-5):
    m = x.mean(dim=axis, keepdim=True)
    v = x.var(dim=axis, keepdim=True, unbiased=False)
    return (x - m) / torch.sqrt(v + eps)
def _scatter_add(tgt, idx, src, axis=0):
    return tgt.clone().index_add_(axis, idx, src)
def _segment_sum(src, seg, n):
    out = torch.zeros((n,) + src.shape[1:], dtype=src.dtype)
    return out.index_add_(0, seg, src)
def _pad(x, pw):
    flat = tuple(v for pair in reversed(pw) for v in pair)
    return torch.nn.functional.pad(x, flat)

kernel_name = 'gated_mix__ssm_conv_s4__swiglu_ffn__prompt'

def setup_inputs():

    _w = (lambda a: (lambda t: t.to(torch.bfloat16) if t.is_floating_point() else t)(torch.as_tensor(a)))
    def _A_setup():
        B, L, D, N = 1, 2048, 448, 256
        A_re = -(lambda _x: torch.exp(torch.as_tensor(_x)))((lambda *s: torch.randn(*s, dtype=torch.bfloat16) * 3.2)(D, N))
        A_im = torch.pi * (lambda *s: torch.randn(*s, dtype=torch.bfloat16) * 0.05)(D, N)
        B_re = (lambda *s: torch.randn(*s, dtype=torch.bfloat16) * 0.05)(D, N)
        B_im = (lambda *s: torch.randn(*s, dtype=torch.bfloat16) * 0.05)(D, N)
        C_re = (lambda *s: torch.randn(*s, dtype=torch.bfloat16) * 0.1)(D, N)
        C_im = (lambda *s: torch.randn(*s, dtype=torch.bfloat16) * 0.1)(D, N)
        log_dt = (lambda *s: torch.randn(*s, dtype=torch.bfloat16) * 0.05)(D) * 0.5 - 4.0
        Dskip = (lambda *s: torch.randn(*s, dtype=torch.bfloat16) * 0.05)(D)
        return {
            "u": _w((lambda *s: torch.randn(*s, dtype=torch.bfloat16) * 0.05)(B, L, D)),
            "A_re": _w(A_re),
            "A_im": _w(A_im),
            "B_re": _w(B_re),
            "B_im": _w(B_im),
            "C_re": _w(C_re),
            "C_im": _w(C_im),
            "log_dt": _w(log_dt),
            "Dskip": _w(Dskip),
        }
    _A_in = _A_setup()

    def _B_setup():
        B, S, D, F = 1, 2048, 448, 1792
        return {
            "x": _w((lambda *s: torch.randn(*s, dtype=torch.bfloat16) * 0.05)(B, S, D)),
            "w_gate": _w((lambda *s: torch.randn(*s, dtype=torch.bfloat16) * 0.05)(D, F)),
            "w_up": _w((lambda *s: torch.randn(*s, dtype=torch.bfloat16) * 0.05)(D, F)),
            "w_down": _w((lambda *s: torch.randn(*s, dtype=torch.bfloat16) * 0.05)(F, D)),
        }
    _B_in = _B_setup()

    return {
        "A_u": _A_in["u"],
        "A_A_re": _A_in["A_re"],
        "A_A_im": _A_in["A_im"],
        "A_B_re": _A_in["B_re"],
        "A_B_im": _A_in["B_im"],
        "A_C_re": _A_in["C_re"],
        "A_C_im": _A_in["C_im"],
        "A_log_dt": _A_in["log_dt"],
        "A_Dskip": _A_in["Dskip"],
        "B_x": _B_in["x"],
        "B_w_gate": _B_in["w_gate"],
        "B_w_up": _B_in["w_up"],
        "B_w_down": _B_in["w_down"],
        "gate_w": _w((lambda *s: torch.randn(*s, dtype=torch.bfloat16) * 0.05)(448) * 16.0),
    }

def reference(A_u, A_A_re, A_A_im, A_B_re, A_B_im, A_C_re, A_C_im, A_log_dt, A_Dskip, B_x, B_w_gate, B_w_up, B_w_down, gate_w):
    def _A_ref(u, A_re, A_im, B_re, B_im, C_re, C_im, log_dt, Dskip):
        Bsz, L, D = u.shape
        dt = torch.exp(log_dt)[:, None]
        A = A_re + 1j * A_im
        Bc = B_re + 1j * B_im
        Cc = C_re + 1j * C_im
        logdA = dt * A
        dB = dt * Bc
        l = (lambda x, dt: x.to(dt))(torch.arange(L), A_re.dtype)
        P = torch.exp(logdA[:, :, None] * l[None, None, :])
        K = torch.einsum("dn,dnl,dn->dl", Cc, P, dB).real
        L2 = 2 * L
        Kp = _pad(K, ((0, 0), (0, L)))
        up = (lambda x, *d: x.permute(*d))(u, 0, 2, 1)
        up = _pad(up, ((0, 0), (0, 0), (0, L)))
        Kf = (lambda x, axes=(-2,-1): torch.fft.rfft2(x.float(), dim=axes))(Kp[:, None, :], axes=(-2, -1))
        Uf = (lambda x, axes=(-2,-1): torch.fft.rfft2(x.float(), dim=axes))(up[:, :, None, :], axes=(-2, -1))
        Yf = Uf * Kf[None, :, :, :]
        y = (lambda x, s, axes=(-2,-1): torch.fft.irfft2(x, s=s, dim=axes).to(torch.bfloat16))(Yf, (1, L2), axes=(-2, -1))[:, :, 0, :L]
        y = (lambda x, *d: x.permute(*d))(y, 0, 2, 1) + u * Dskip[None, None, :]
        return y

    def _B_ref(x, w_gate, w_up, w_down):
        g = _silu(x @ w_gate)
        u = x @ w_up
        return (g * u) @ w_down

    x = A_u
    g = _sigmoid((x * gate_w).sum(-1, keepdims=True))
    a = _A_ref(x, A_A_re, A_A_im, A_B_re, A_B_im, A_C_re, A_C_im, A_log_dt, A_Dskip)
    b = _B_ref(x, B_w_gate, B_w_up, B_w_down)
    return g * a + (1 - g) * b
```

```python
import re

def v(a, n=1):
    return f"v{a}" if n == 1 else f"v[{a}:{a+n-1}]"
def s(a, n=1):
    return f"s{a}" if n == 1 else f"s[{a}:{a+n-1}]"

_REG = re.compile(r"^(-|abs\()?\s*([vs])(?:(\d+)|\[(\d+):(\d+)\])\)?$")
TRANS = ("v_exp_f32", "v_log_f32", "v_rcp_f32", "v_rsq_f32", "v_sqrt_f32", "v_sin_f32", "v_cos_f32")

def regs_of(op):
    op = op.strip()
    if op == "vcc": return [("s", "vcc")]
    if op == "exec": return [("s", "exec")]
    if op == "m0": return [("s", "m0")]
    m = _REG.match(op)
    if not m: return []
    k = m.group(2)
    if m.group(3) is not None: return [(k, int(m.group(3)))]
    return [(k, i) for i in range(int(m.group(4)), int(m.group(5)) + 1)]

def split_ops(rest):
    out, depth, cur = [], 0, ""
    for ch in rest:
        if ch == "[": depth += 1
        if ch == "]": depth -= 1
        if ch == "," and depth == 0:
            out.append(cur.strip()); cur = ""
        else: cur += ch
    if cur.strip(): out.append(cur.strip())
    res = []
    for o in out:
        res.append(o.split()[0] if o.split() else o)
    return res

class Asm:
    def __init__(self):
        self.lines = []
        self.vm = 0
        self.lg = 0
        self.vm_done = 0
        self.lg_done = 0
    def __call__(self, text):
        for t in text.split("\n"):
            t = t.strip()
            if t: self.lines.append(t)
    def label(self, name): self.lines.append(name + ":")
    def comment(self, t): self.lines.append("; " + t)
    def vmop(self, text):
        self(text); self.vm += 1; return self.vm
    def lgop(self, text):
        self(text); self.lg += 1; return self.lg
    def wait(self, vm=None, lg=None):
        parts = []
        if vm is not None and vm > self.vm_done:
            self.vm_done = vm
            n = self.vm - vm
            assert n >= 0
            assert n <= 63
            parts.append(f"vmcnt({n})")
        if lg is not None and lg > self.lg_done:
            self.lg_done = lg
            n = self.lg - lg
            assert n >= 0
            if n <= 15: parts.append(f"lgkmcnt({n})")
            else: raise AssertionError("lgkm too deep")
        if parts: self("s_waitcnt " + " ".join(parts))
    def wait_all(self, vm=True, lg=True):
        parts = []
        if vm: parts.append("vmcnt(0)"); self.vm_done = self.vm
        if lg: parts.append("lgkmcnt(0)"); self.lg_done = self.lg
        self("s_waitcnt " + " ".join(parts))

def classify(line):
    t = line.split(";")[0].strip()
    if not t or t.endswith(":") or t.startswith("."): return None
    p = t.split(None, 1)
    mn = p[0]; ops = split_ops(p[1]) if len(p) > 1 else []
    R = [regs_of(o) for o in ops]
    flat = lambda L: [x for l in L for x in l]
    if mn.startswith("v_mfma"):
        return mn, R[0], flat(R[1:3]), "mfma", R[3] if len(R) > 3 else []
    if mn.startswith("v_cmp"):
        return mn, R[0], flat(R[1:]), "valu", []
    if mn in ("v_readfirstlane_b32", "v_readlane_b32"):
        return mn, R[0], flat(R[1:]), "valu", []
    if mn.startswith("v_"):
        d = R[0]; sr = flat(R[1:])
        if mn.startswith(("v_fmac", "v_dot2c", "v_pk_fmac")) or "permlane" in mn: sr = sr + d
        if "permlane" in mn and "swap" in mn: d = d + R[1]
        if mn.startswith(("v_add_co", "v_sub_co", "v_addc_co")): d = d + R[1]; sr = flat(R[2:])
        if mn == "v_cndmask_b32" : pass
        return mn, d, sr, "valu", []
    if mn.startswith("ds_read"):
        return mn, R[0], flat(R[1:]), "ds", []
    if mn.startswith("ds_"):
        return mn, [], flat(R), "ds", []
    if mn.startswith(("buffer_load", "global_load")):
        if re.search(r"\blds\b", t): return mn, [], flat(R) + [("s", "m0")], "vmem", []
        return mn, R[0], flat(R[1:]), "vmem", []
    if mn.startswith(("buffer_store", "global_store", "buffer_atomic", "global_atomic")):
        return mn, [], flat(R), "vmem_st", R[0]
    if mn.startswith("s_"):
        if mn.startswith(("s_cmp", "s_cbranch", "s_branch", "s_waitcnt", "s_barrier", "s_nop", "s_endpgm", "s_sleep", "s_setprio", "s_bitcmp")):
            return mn, [], flat(R), "salu", []
        return mn, (R[0] if R else []), flat(R[1:]), "salu", []
    raise ValueError("unknown instr " + line)

def hazard_pass(lines):
    out = []
    pos = 0
    vw = {}
    sw = {}
    m0w = -99
    stw = {}
    cr = {}
    ninserted = 0
    for line in lines:
        c = classify(line)
        if c is None:
            out.append(line); continue
        mn, d, sr, kind, extra = c
        need = 0
        def req(p, n):
            nonlocal need
            gap = pos - p - 1
            if gap < n: need = max(need, n - gap)
        isdpp = ("row_" in line) or ("wave_" in line) or ("quad_perm" in line) or ("row_bcast" in line)
        if kind == "mfma":
            passes = 8 if "32x32x16" in mn else 4
            for r in sr:
                if r in vw:
                    p, k = vw[r]
                    if k in ("valu", "trans"): req(p, 2)
                    elif k == "mfma8": req(p, 12)
                    elif k == "mfma4": req(p, 8)
            same = extra == d
            for r in extra:
                if r in vw:
                    p, k = vw[r]
                    if k in ("valu", "trans"): req(p, 2)
                    elif k.startswith("mfma"):
                        if k != f"mfma{passes}": req(p, 10)
        else:
            rd = list(sr)
            for r in rd:
                if r[0] == "v" and r in vw:
                    p, k = vw[r]
                    if k == "mfma8": req(p, 12)
                    elif k == "mfma4": req(p, 8)
                    elif kind == "valu":
                        if k == "trans" and mn not in TRANS: req(p, 1)
                        if isdpp or "permlane" in mn: req(p, 2)
                        if mn in ("v_readfirstlane_b32", "v_readlane_b32"): req(p, 1)
                if r[0] == "s" and r in sw:
                    if kind in ("vmem", "vmem_st"): req(sw[r], 5)
                    elif kind == "valu": req(sw[r], 4 if mn in ("v_readlane_b32", "v_writelane_b32") else 2)
                    elif kind == "salu": req(sw[r], 1)
                if r == ("s", "m0") and kind == "vmem": req(m0w, 1)
            if mn.startswith("s_cbranch_vcc") and ("s", "vcc") in sw: req(sw[("s", "vcc")], 5)
            for r in d:
                if r[0] == "v":
                    if r in vw:
                        p, k = vw[r]
                        if k == "mfma8": req(p, 12)
                        elif k == "mfma4": req(p, 8)
                    if r in stw: req(stw[r], 2)
                    if kind == "valu" and r in cr:
                        p, ps = cr[r]; req(p, 7 if ps == 8 else 3)
        while need > 0:
            n = min(need, 16)
            out.append(f"s_nop {n-1}"); pos += n; need -= n; ninserted += 1
        out.append(line)
        if kind == "mfma":
            passes = 8 if "32x32x16" in mn else 4
            for r in d: vw[r] = (pos, f"mfma{passes}")
            for r in extra: cr[r] = (pos, passes)
        elif kind == "valu":
            for r in d:
                if r[0] == "v": vw[r] = (pos, "trans" if mn in TRANS else "valu")
                else: sw[r] = pos
        elif kind in ("ds", "vmem"):
            for r in d: vw.pop(r, None)
        elif kind == "vmem_st":
            if "x4" in mn or "x3" in mn:
                for r in extra: stw[r] = pos
        elif kind == "salu":
            for r in d:
                if r == ("s", "m0"): m0w = pos
                sw.pop(r, None)
        if mn == "s_nop":
            pos += int(line.split()[1]) + 1
        else:
            pos += 1
    return out, ninserted
```

```python
import sys
from asmlib import *

NAME = "gated_mix__ssm_conv_s4__swiglu_ffn__prompt"
WS_F1, WS_F2, WS_F3, WS_GATE = 0x1000, 0x2000, 0x4000, 0x8000
WS_PROF = 0x40000
WS_UT, WS_AT, WS_H = 0x100000, 0x300000, 0x500000
WS_SPAN = 0x1000000
NWG = 480
SPIN_MAX = 20000
LOG2E = 0x3fb8aa3b
NLOG2E = 0xbfb8aa3b

class Opt:
    prof = False
    rot1 = True
    rot2 = True
    pdh = 4

sX, sW, sWd, sWS, sO, sH = 40, 44, 48, 52, 56, 68
sWAVE, sM, sJ, sEP, sM2, sN2, sXC, sSLOT = 60, 61, 62, 63, 64, 65, 66, 67
sT0, sT1, sT2, sT3 = 72, 73, 74, 75
sK0 = 76
sXo, sWo, sDo, sHo, sLB = 78, 79, 80, 81, 82
sXb, sWb, sHst = 83, 84, 85
sSPIN = 86
sEP2 = 88
sPROF = 4

def srd(A, d, lo, size):
    A(f"s_mov_b32 s{d}, s{lo}\ns_mov_b32 s{d+1}, s{lo+1}\ns_mov_b32 s{d+2}, {size}\ns_mov_b32 s{d+3}, 0x20000")

class Prof:
    def __init__(self, A, on, vreg):
        self.A, self.on, self.vreg, self.n, self.pending = A, on, vreg, 0, False
        self.names = []
    def stamp(self, name):
        if not self.on: return
        A = self.A
        A("s_memrealtime s[90:91]")
        A("s_waitcnt lgkmcnt(0)")
        A(f"v_writelane_b32 v{self.vreg}, s90, {self.n}")
        self.names.append(name); self.n += 1
    def flush(self, tmp):
        if not self.on: return
        A = self.A
        A(f"s_lshl_b32 s90, s2, 2\ns_add_u32 s90, s90, s{sWAVE}\ns_lshl_b32 s90, s90, 8\ns_add_u32 s90, s90, {WS_PROF}")
        A(f"v_mbcnt_lo_u32_b32 v{tmp}, -1, 0\nv_mbcnt_hi_u32_b32 v{tmp}, -1, v{tmp}\nv_lshlrev_b32 v{tmp}, 2, v{tmp}")
        A(f"buffer_store_dword v{self.vreg}, v{tmp}, s[{sWS}:{sWS+3}], s90 offen")

def epoch_finish(A):
    A(f"s_mul_i32 s{sEP}, s{sEP}, 0x9E3779B1\ns_add_u32 s{sEP}, s{sEP}, 0x7F4A7C15")
    A(f"s_mov_b32 s{sEP2}, s{sEP}\ns_mov_b32 s{sEP2+1}, s{sEP}")

_uid = [0]
def uid(p):
    _uid[0] += 1; return f"L_{p}{_uid[0]}"

def poll_issue(A, soff, n):
    A(f"s_load_dwordx16 s[4:19], s[36:37], s{soff} glc")
    if n > 16:
        A(f"s_add_u32 s{sT3}, s{soff}, 64")
        A(f"s_load_dwordx16 s[20:35], s[36:37], s{sT3} glc")

def poll_check(A, soff, n):
    top, bad, ok = uid("pt"), uid("pb"), uid("po")
    A(f"s_mov_b32 s{sSPIN}, 0")
    A.label(top)
    A("s_waitcnt lgkmcnt(0)")
    for i in range(0, n, 2):
        A(f"s_cmp_eq_u64 s[{4+i}:{5+i}], s[{sEP2}:{sEP2+1}]")
        A(f"s_cbranch_scc0 {bad}")
    A(f"s_branch {ok}")
    A.label(bad)
    A(f"s_add_u32 s{sSPIN}, s{sSPIN}, 1\ns_cmp_ge_u32 s{sSPIN}, {SPIN_MAX}\ns_cbranch_scc1 {ok}")
    A("s_sleep 1")
    poll_issue(A, soff, n)
    A(f"s_branch {top}")
    A.label(ok)

def wrap_add(A, reg, step, limit):
    A(f"s_add_u32 s{sT0}, s{reg}, {step}\ns_sub_u32 s{sT1}, s{sT0}, {limit}\ns_cselect_b32 s{reg}, s{sT0}, s{sT1}")

def gemm_role(A, opt):
    vWo, vXo, vXr = 2, 6, 10
    vWr = 224
    vHst, vFlag, vEp = 14, 15, 228
    vPROF = 229
    FB, ACC, XF = 16, 48, 112
    TMP = 232
    P = Prof(A, opt.prof, vPROF)
    A.label("L_gemm")
    A(f"s_and_b32 s{sT0}, s{sXC}, 3\ns_lshl_b32 s{sT0}, s{sT0}, 2\ns_and_b32 s{sT1}, s{sSLOT}, 3\ns_add_u32 s{sM}, s{sT0}, s{sT1}")
    A(f"s_lshr_b32 s{sT0}, s{sXC}, 2\ns_mul_i32 s{sT0}, s{sT0}, 7\ns_add_u32 s{sJ}, s{sT0}, s{sN2}")
    A(f"s_cmp_lt_u32 s{sWAVE}, 2\ns_cselect_b32 s{sW}, s24, s26\ns_cselect_b32 s{sW+1}, s25, s27\ns_mov_b32 s{sW+2}, 1605632\ns_mov_b32 s{sW+3}, 0x20000")
    srd(A, sWd, 28, 1605632)
    srd(A, sO, 32, 1835008)
    if opt.rot1:
        A(f"s_and_b32 s{sT0}, s{sSLOT}, 3\ns_lshl_b32 s{sT0}, s{sT0}, 1\ns_add_u32 s{sT0}, s{sT0}, s{sN2}")
        A(f"s_sub_u32 s{sT1}, s{sT0}, 7\ns_cselect_b32 s{sT2}, s{sT0}, s{sT1}")
    else:
        A(f"s_mov_b32 s{sT2}, 0")
    A(f"s_lshl_b32 s{sXo}, s{sT2}, 7\ns_mul_i32 s{sWo}, s{sT2}, 229376")
    A(f"s_lshl_b32 s{sT0}, s{sM}, 2\ns_add_u32 s{sT0}, s{sT0}, s{sWAVE}\ns_mul_i32 s{sXb}, s{sT0}, 28672")
    A(f"s_and_b32 s{sT1}, s{sWAVE}, 1\ns_mul_i32 s{sT1}, s{sT1}, 114688\ns_lshl_b32 s{sWb}, s{sJ}, 8\ns_add_u32 s{sWb}, s{sWb}, s{sT1}")
    A(f"s_lshl_b32 s{sLB}, s{sWAVE}, 12")
    A("v_lshrrev_b32 v1, 3, v0")
    A("v_and_b32 v232, 7, v0")
    A("v_lshrrev_b32 v233, 1, v1")
    A("v_and_b32 v234, 1, v233\nv_lshlrev_b32 v234, 2, v234\nv_xor_b32 v234, v234, v232\nv_lshlrev_b32 v234, 4, v234")
    A(f"v_mul_u32_u24 v{vWo}, 3584, v1\nv_add_u32 v{vWo}, v{vWo}, v234")
    for q in range(1, 4): A(f"v_add_u32 v{vWo+q}, {q*27648}, v{vWo}")
    A(f"v_xor_b32 v235, v233, v232\nv_lshlrev_b32 v235, 4, v235")
    A(f"v_mul_u32_u24 v236, 896, v1")
    A(f"v_add_u32 v{vXo}, v236, v235\nv_xor_b32 v235, 64, v235\nv_add_u32 v237, v236, v235")
    A(f"v_add_u32 v{vXo+1}, 6144, v237\nv_add_u32 v{vXo+2}, 12288, v{vXo}\nv_add_u32 v{vXo+3}, 18432, v237")
    vDo = 230
    A(f"v_add_u32 v{vDo}, v236, v234\nv_add_u32 v{vDo+1}, 6144, v{vDo}")

    units = []
    for c in range(7): units += [("X", c), ("W", c)]
    for c in range(7): units += [("V", c)]
    tok = {}
    def issue_unit(u):
        slot = u % 5
        fns = []
        if u < 21:
            kind, c = units[u]
            def pre():
                A(f"s_add_u32 m0, s{sLB}, {slot*16384}")
                if kind == "X":
                    A(f"s_add_u32 s{sT2}, s{sXb}, s{sXo}")
                    wrap_add(A, sXo, 128, 896)
                else:
                    A(f"s_add_u32 s{sT2}, s{sWb}, s{sWo}")
                    wrap_add(A, sWo, 229376, 1605632)
                    if u == 13: A(f"s_add_u32 s{sWb}, s{sWb}, 128")
            fns.append(pre)
            for q in range(4):
                def f(q=q):
                    if kind == "X": t = A.vmop(f"buffer_load_dwordx4 v{vXo+q}, s[{sX}:{sX+3}], s{sT2} offen offset:{q*1024} lds")
                    else: t = A.vmop(f"buffer_load_dwordx4 v{vWo+q}, s[{sW}:{sW+3}], s{sT2} offen offset:{q*1024} lds")
                    tok[u] = t
                fns.append(f)
        else:
            for st in (2 * (u - 21), 2 * (u - 21) + 1):
                fns += issue_wd(st)
        return fns
    dtok = {}
    def issue_wd(st):
        slot = (21 + st // 2) % 5
        def pre():
            A(f"s_add_u32 m0, s{sLB}, {slot*16384 + (st & 1)*2048}")
            A(f"s_mov_b32 s{sT2}, s{sDo}")
            wrap_add(A, sDo, 114688, 1605632)
            if st == 13: A(f"s_add_u32 s{sDo}, s{sDo}, {4*14336}")
        def f(img):
            dtok[st] = A.vmop(f"buffer_load_dwordx4 v{vDo+img}, s[{sWd}:{sWd+3}], s{sT2} offen offset:{img*1024} lds")
        return [pre, lambda: f(0), lambda: f(1)]

    for u in range(5):
        for f in issue_unit(u): f()
    A("v_and_b32 v232, 31, v0\nv_lshrrev_b32 v233, 5, v0")
    A("v_bfe_u32 v234, v0, 1, 3\nv_xor_b32 v234, v234, v233\nv_lshlrev_b32 v234, 4, v234")
    A(f"v_lshl_add_u32 v{vXr}, v232, 7, v234\nv_add_u32 v{vXr}, s{sLB}, v{vXr}")
    for ks in range(1, 4): A(f"v_xor_b32 v{vXr+ks}, {ks*32}, v{vXr}")
    A("v_bfe_u32 v234, v0, 2, 2")
    A("v_lshlrev_b32 v235, 10, v233\nv_lshl_add_u32 v235, v234, 7, v235")
    A("v_bfe_u32 v236, v0, 3, 1\nv_lshl_add_u32 v235, v236, 6, v235")
    A("v_bfe_u32 v236, v0, 4, 1\nv_and_b32 v237, 1, v0\nv_bfe_u32 v238, v0, 1, 1")
    A(f"v_lshl_add_u32 v239, v238, 3, v235")
    A(f"v_lshl_add_u32 v{vWr}, v236, 5, v239\nv_lshl_add_u32 v{vWr}, v237, 4, v{vWr}")
    A(f"v_xor_b32 v{vWr+1}, 64, v{vWr}\nv_add_u32 v{vWr+2}, 0x10000, v{vWr}\nv_add_u32 v{vWr+3}, 0x10000, v{vWr+1}")
    A(f"v_lshl_add_u32 v1, v237, 5, v239\nv_lshl_add_u32 v1, v236, 4, v1\nv_add_u32 v1, s{sLB}, v1")
    A(f"s_and_b32 s{sT0}, s{sWAVE}, 1\ns_lshl_b32 s{sT0}, s{sT0}, 6\nv_xor_b32 v1, s{sT0}, v1")
    A(f"v_lshlrev_b32 v{vHst}, 4, v0")
    A(f"s_lshl_b32 s{sT0}, s{sM}, 1\ns_lshr_b32 s{sT1}, s{sWAVE}, 1\ns_add_u32 s{sT0}, s{sT0}, s{sT1}\ns_mul_i32 s{sHst}, s{sT0}, 229376")
    A(f"s_and_b32 s{sT1}, s{sWAVE}, 1\ns_lshl_b32 s{sT1}, s{sT1}, 10\ns_add_u32 s{sHst}, s{sHst}, s{sT1}")
    A(f"s_lshl_b32 s{sT1}, s{sJ}, 14\ns_add_u32 s{sHst}, s{sHst}, s{sT1}\ns_add_u32 s{sHst}, s{sHst}, {WS_H}")
    A(f"s_lshl_b32 s{sT0}, s{sM}, 7\ns_lshl_b32 s{sT1}, s{sJ}, 2\ns_add_u32 s{sT0}, s{sT0}, s{sT1}\ns_add_u32 s{sT0}, s{sT0}, {WS_F2}")
    A(f"s_cmp_eq_u32 s{sWAVE}, 0\ns_cselect_b32 s{sT0}, s{sT0}, 0x7ffff000")
    A(f"v_mov_b32 v{vFlag}, 0x7ffff000\nv_writelane_b32 v{vFlag}, s{sT0}, 0")
    if opt.rot2: A(f"s_lshl_b32 s{sT0}, s{sN2}, 4\ns_add_u32 s{sT0}, s{sT0}, s{sWAVE}")
    else: A(f"s_mov_b32 s{sT0}, s{sWAVE}")
    A(f"s_mul_i32 s{sDo}, s{sT0}, 14336\ns_lshl_b32 s{sT1}, s{sN2}, 7\ns_add_u32 s{sDo}, s{sDo}, s{sT1}\ns_lshl_b32 s{sHo}, s{sT0}, 11")
    A(f"s_mul_i32 s{sT0}, s{sM2}, 229376\ns_add_u32 s{sT0}, s{sT0}, {WS_H}\ns_add_u32 s{sH}, s36, s{sT0}\ns_addc_u32 s{sH+1}, s37, 0\ns_mov_b32 s{sH+2}, 229376\ns_mov_b32 s{sH+3}, 0x20000")
    A(f"s_mov_b32 s{sK0}, {NLOG2E}\ns_mov_b32 s{sK0+1}, {NLOG2E}")
    A("s_waitcnt lgkmcnt(0)")
    epoch_finish(A)
    A(f"v_mov_b32 v{vEp}, s{sEP}")
    P.stamp("setup")

    def wu(st): return 2 * st + 1 if st < 7 else 7 + st
    ftok = {}
    xtok = {}
    def rd_frag(st, i):
        ks, q = i // 4, i % 4
        mat, ft = q >> 1, q & 1
        slot = wu(st) % 5
        base = vWr + ft + (2 if slot == 4 else 0)
        off = (0 if slot == 4 else slot * 16384) + mat * 8192 + ks * 2048
        b = FB + 4 * (i % 8)
        A.lgop(f"ds_read_b64_tr_b16 v[{b}:{b+1}], v{base} offset:{off}")
        ftok[(st, i)] = A.lgop(f"ds_read_b64_tr_b16 v[{b+2}:{b+3}], v{base} offset:{off+512}")
    def rd_x(c, ks):
        slot = (2 * c) % 5
        r = XF + 16 * c + 4 * ks
        if slot == 4:
            A(f"v_add_u32 v{TMP}, 0x10000, v{vXr+ks}")
            xtok[(c, ks)] = A.lgop(f"ds_read_b128 v[{r}:{r+3}], v{TMP}")
        else:
            xtok[(c, ks)] = A.lgop(f"ds_read_b128 v[{r}:{r+3}], v{vXr+ks} offset:{slot*16384}")
    next_unit = [5]
    pend = []
    def free_units(upto):
        while next_unit[0] <= min(upto + 5, 25):
            pend.extend(issue_unit(next_unit[0])); next_unit[0] += 1
    def drain(n):
        for _ in range(n):
            if pend: pend.pop(0)()
    st_tok = {}
    def barrier(st):
        drain(99)
        need = tok[wu(st)] if st < 14 else None
        if st == 9: need = max(need, st_tok["A"])
        if opt.prof: P.stamp(f"preB{st}")
        A.wait_all(vm=False)
        if need is not None: A.wait(vm=need)
        A("s_barrier")
        if opt.prof: P.stamp(f"B{st}")
        if st == 9:
            A.vmop(f"buffer_store_dword v{vEp}, v{vFlag}, s[{sWS}:{sWS+3}], 0 offen sc1")
        if st >= 1: free_units(wu(st - 1))

    def epilogue1(hf, mid=None):
        for ft in range(2):
            G, U = ACC + 16 * ft, ACC + 32 + 16 * ft
            for blk in range(2):
                t = TMP; o = TMP + 16 + 4 * blk
                for p in range(4):
                    r = 8 * blk + 2 * p
                    A(f"v_pk_mul_f32 v[{t+2*p}:{t+2*p+1}], v[{G+r}:{G+r+1}], s[{sK0}:{sK0+1}]")
                for p in range(8): A(f"v_exp_f32 v{t+p}, v{t+p}")
                for p in range(4):
                    r = 8 * blk + 2 * p
                    A(f"v_pk_mul_f32 v[{t+8+2*p}:{t+9+2*p}], v[{G+r}:{G+r+1}], v[{U+r}:{U+r+1}]")
                for p in range(4): A(f"v_pk_add_f32 v[{t+2*p}:{t+2*p+1}], v[{t+2*p}:{t+2*p+1}], 1.0 op_sel_hi:[1,0]")
                for p in range(8): A(f"v_rcp_f32 v{t+p}, v{t+p}")
                for p in range(4): A(f"v_pk_mul_f32 v[{t+8+2*p}:{t+9+2*p}], v[{t+8+2*p}:{t+9+2*p}], v[{t+2*p}:{t+2*p+1}]")
                for p in range(4): A(f"v_cvt_pk_bf16_f32 v{o+p}, v{t+8+2*p}, v{t+9+2*p}")
                if blk == 0: A(f"s_add_u32 s{sT2}, s{sHst}, {hf*8192 + ft*4096}")
                st_tok["AB"[hf]] = A.vmop(f"buffer_store_dwordx4 v[{o}:{o+3}], v{vHst}, s[{sWS}:{sWS+3}], s{sT2} offen offset:{blk*2048} sc1")
            if ft == 0 and mid: mid()

    barrier(0)
    for ks in range(4): rd_x(0, ks)
    for i in range(6): rd_frag(0, i)
    for st in range(14):
        c = st % 7
        for i in range(16):
            ks, q = i // 4, i % 4
            need = ftok[(st, i)]
            if st < 7: need = max(need, xtok[(c, ks)])
            A.wait(lg=need)
            b = FB + 4 * (i % 8); x = XF + 16 * c + 4 * ks; a = ACC + 16 * q
            cin = "0" if (c == 0 and ks == 0) else f"v[{a}:{a+15}]"
            A(f"v_mfma_f32_32x32x16_bf16 v[{a}:{a+15}], v[{b}:{b+3}], v[{x}:{x+3}], {cin}")
            if i <= 9: rd_frag(st, i + 6)
            if i == 6 and st < 7: free_units(2 * st)
            if i == 12:
                barrier(st + 1)
                if st < 13:
                    if st + 1 < 7: rd_x(st + 1, 0)
                    rd_frag(st + 1, 0); rd_frag(st + 1, 1)
                else:
                    A(f"s_lshr_b32 s{sT0}, s{sM2}, 1\ns_lshl_b32 s{sT0}, s{sT0}, 7\ns_add_u32 s{sXo}, s{sT0}, {WS_F2}")
                    poll_issue(A, sXo, 14)
            elif i == 13 and st < 13:
                rd_frag(st + 1, 2); rd_frag(st + 1, 3)
                if st + 1 < 7: rd_x(st + 1, 1)
            elif i == 14 and st < 13:
                rd_frag(st + 1, 4)
                if st + 1 < 7: rd_x(st + 1, 2)
            elif i == 15 and st < 13:
                rd_frag(st + 1, 5)
                if st + 1 < 7: rd_x(st + 1, 3)
            drain(2 if i != 12 else 0)
        if st == 6: epilogue1(0)
    drain(99)

    HR = XF
    HD = 12
    vHo = 2
    vDr = 4
    AC2 = ACC
    htok = {}
    def issue_h(st):
        r = HR + 8 * (st % HD)
        A.vmop(f"buffer_load_dwordx4 v[{r}:{r+3}], v{vHo}, s[{sH}:{sH+3}], s{sHo} offen sc1")
        htok[st] = A.vmop(f"buffer_load_dwordx4 v[{r+4}:{r+7}], v{vHo+1}, s[{sH}:{sH+3}], s{sHo} offen sc1")
        wrap_add(A, sHo, 16384, 229376)
        if st == 13: A(f"s_add_u32 s{sHo}, s{sHo}, 8192")
    def mid():
        A(f"s_lshr_b32 s{sT0}, s{sWAVE}, 1\ns_lshl_b32 s{sT0}, s{sT0}, 10")
        A(f"v_or_b32 v{vHo}, s{sT0}, v{vHst}\nv_xor_b32 v{vHo+1}, 0x400, v{vHo}")
        A(f"v_mov_b32 v{vDr}, v1\nv_xor_b32 v{vDr+1}, 64, v1\nv_add_u32 v{vDr+2}, 0x10000, v{vDr}\nv_add_u32 v{vDr+3}, 0x10000, v{vDr+1}")
        poll_check(A, sXo, 14)
        P.stamp("flagA")
        for st in range(opt.pdh): issue_h(st)
    epilogue1(1, mid)
    P.stamp("epiB")
    wtok = {}
    def rd_wd(st):
        slot = (21 + st // 2) % 5
        off = (0 if slot == 4 else slot * 16384) + (st & 1) * 2048
        for dt in range(2):
            base = vDr + dt + (2 if slot == 4 else 0)
            b = FB + 8 * (st % 2) + 4 * dt
            A.lgop(f"ds_read_b64_tr_b16 v[{b}:{b+1}], v{base} offset:{off}")
            wtok[(st, dt)] = A.lgop(f"ds_read_b64_tr_b16 v[{b+2}:{b+3}], v{base} offset:{off+512}")
    A.wait(vm=dtok[0])
    rd_wd(0)
    FLAG_STEP = 3
    POLL_STEP = 14 - opt.pdh
    for st in range(28):
        if st == FLAG_STEP:
            A.wait(vm=st_tok["B"])
            A("s_barrier")
            A.vmop(f"buffer_store_dword v{vEp}, v{vFlag}, s[{sWS}:{sWS+3}], 0 offen offset:2048 sc1")
        if st == POLL_STEP:
            A.wait_all(vm=False)
            A(f"s_add_u32 s{sXo}, s{sXo}, 2048")
            poll_issue(A, sXo, 14)
            poll_check(A, sXo, 14)
            P.stamp("flagB")
        if st + opt.pdh < 28: issue_h(st + opt.pdh)
        if st == 24:
            A.wait_all(vm=False)
            A(f"s_lshl_b32 s{sXo}, s{sN2}, 7\ns_add_u32 s{sXo}, s{sXo}, {WS_F3}")
            poll_issue(A, sXo, 32)
            poll_check(A, sXo, 32)
            P.stamp("flagY")
            ATS = (21 + 10) % 5
            A(f"v_lshrrev_b32 v{TMP}, 3, v0\nv_lshlrev_b32 v{TMP}, 12, v{TMP}\nv_and_b32 v{TMP+1}, 7, v0\nv_lshl_add_u32 v{TMP}, v{TMP+1}, 4, v{TMP}")
            A(f"v_add_u32 v{TMP+1}, {32768-1024}, v{TMP}")
            A(f"s_lshl_b32 s{sT0}, s{sN2}, 2\ns_add_u32 s{sT0}, s{sT0}, s{sWAVE}\ns_lshl_b32 s{sT0}, s{sT0}, 16\ns_lshl_b32 s{sT1}, s{sM2}, 7\ns_add_u32 s{sT0}, s{sT0}, s{sT1}\ns_add_u32 s{sT2}, s{sT0}, {WS_AT}")
            A(f"s_add_u32 m0, s{sLB}, {ATS*16384}")
            A.vmop(f"buffer_load_dwordx4 v{TMP}, s[{sWS}:{sWS+3}], s{sT2} offen sc1 lds")
            at_tok = A.vmop(f"buffer_load_dwordx4 v{TMP+1}, s[{sWS}:{sWS+3}], s{sT2} offen offset:1024 sc1 lds")
            vG = TMP + 2
            A(f"v_and_b32 v{TMP+4}, 31, v0\nv_lshlrev_b32 v{TMP+4}, 3, v{TMP+4}")
            A(f"s_lshl_b32 s{sT0}, s{sM2}, 1\ns_lshr_b32 s{sT1}, s{sWAVE}, 1\ns_add_u32 s{sT0}, s{sT0}, s{sT1}\ns_lshl_b32 s{sWo}, s{sT0}, 8\ns_add_u32 s{sWo}, s{sWo}, {WS_GATE}")
            g_tok = A.vmop(f"buffer_load_dwordx2 v[{vG}:{vG+1}], v{TMP+4}, s[{sWS}:{sWS+3}], s{sWo} offen sc1")
        need = htok[st]
        if st + 1 < 28: need = max(need, dtok[st + 1])
        A.wait(vm=need)
        if st + 1 < 28: rd_wd(st + 1)
        r = HR + 8 * (st % HD)
        for dt in range(2):
            A.wait(lg=wtok[(st, dt)])
            for tt in range(2):
                a = AC2 + 16 * (dt + 2 * tt); b = FB + 8 * (st % 2) + 4 * dt
                cin = "0" if st == 0 else f"v[{a}:{a+15}]"
                A(f"v_mfma_f32_32x32x16_bf16 v[{a}:{a+15}], v[{b}:{b+3}], v[{r+4*tt}:{r+4*tt+3}], {cin}")
        if st + 10 < 28:
            for f in issue_wd(st + 10): f()
    P.stamp("g2loop")
    RS = [2, 3, 0]
    A(f"v_add_u32 v{TMP+5}, s{sLB}, v{vHst}")
    for a in range(1, 4):
        for k in range(4):
            r = AC2 + 16 * a + 4 * k
            A.lgop(f"ds_write_b128 v{TMP+5}, v[{r}:{r+3}] offset:{RS[a-1]*16384 + k*1024}")
    for a in range(1, 4): A(f"v_xor_b32 v{TMP+5+a}, {a << 12}, v{TMP+5}")
    A(f"v_lshrrev_b32 v{TMP+9}, 5, v0\nv_lshlrev_b32 v{TMP+9}, 12, v{TMP+9}\nv_bfe_u32 v{TMP+10}, v0, 2, 2\nv_lshl_add_u32 v{TMP+9}, v{TMP+10}, 7, v{TMP+9}")
    A(f"v_bfe_u32 v{TMP+10}, v0, 4, 1\nv_lshl_add_u32 v{TMP+9}, v{TMP+10}, 5, v{TMP+9}\nv_and_b32 v{TMP+10}, 3, v0\nv_lshl_add_u32 v{TMP+9}, v{TMP+10}, 3, v{TMP+9}")
    A(f"s_and_b32 s{sT0}, s{sWAVE}, 1\ns_lshl_b32 s{sT0}, s{sT0}, 13\ns_lshr_b32 s{sT1}, s{sWAVE}, 1\ns_lshl_b32 s{sT1}, s{sT1}, 6\ns_add_u32 s{sT0}, s{sT0}, s{sT1}")
    A(f"v_add_u32 v{TMP+9}, s{sT0}, v{TMP+9}")
    A(f"v_and_b32 v{TMP+10}, 31, v0\nv_mul_u32_u24 v{TMP+10}, 896, v{TMP+10}\nv_lshrrev_b32 v{TMP+11}, 5, v0\nv_lshl_add_u32 v{TMP+10}, v{TMP+11}, 5, v{TMP+10}")
    A(f"s_lshl_b32 s{sT0}, s{sM2}, 1\ns_lshr_b32 s{sT1}, s{sWAVE}, 1\ns_add_u32 s{sT0}, s{sT0}, s{sT1}\ns_mul_i32 s{sT2}, s{sT0}, 28672")
    A(f"s_lshl_b32 s{sT0}, s{sN2}, 1\ns_and_b32 s{sT1}, s{sWAVE}, 1\ns_add_u32 s{sT0}, s{sT0}, s{sT1}\ns_lshl_b32 s{sT0}, s{sT0}, 6\ns_add_u32 s{sT2}, s{sT2}, s{sT0}")
    A("s_waitcnt vmcnt(0) lgkmcnt(0)")
    A("s_barrier")
    PR = XF
    rt = []
    for a in range(1, 4):
        for k in range(4):
            r = PR + 16 * (a - 1) + 4 * k
            t = A.lgop(f"ds_read_b128 v[{r}:{r+3}], v{TMP+5+a} offset:{RS[a-1]*16384 + k*1024}")
        rt.append(t)
    vG = TMP + 2
    top, ok = uid("gt"), uid("go")
    A(f"s_mov_b32 s{sSPIN}, 0")
    A.label(top)
    A(f"v_cmp_ne_u32 vcc, s{sEP}, v{vG+1}")
    A(f"s_cbranch_vccz {ok}")
    A(f"s_add_u32 s{sSPIN}, s{sSPIN}, 1\ns_cmp_ge_u32 s{sSPIN}, {SPIN_MAX}\ns_cbranch_scc1 {ok}")
    A(f"buffer_load_dwordx2 v[{vG}:{vG+1}], v{TMP+4}, s[{sWS}:{sWS+3}], s{sWo} offen sc1")
    A("s_waitcnt vmcnt(0)")
    A(f"s_branch {top}")
    A.label(ok)
    A.wait(lg=rt[0])
    AT = FB
    ATS = (21 + 10) % 5
    for e in range(4):
        at = A.lgop(f"ds_read_b64_tr_b16 v[{AT+2*e}:{AT+2*e+1}], v{TMP+9} offset:{ATS*16384 + e*512}")
    A(f"v_lshlrev_b32 v{TMP+12}, 16, v{vG}\nv_and_b32 v{TMP+14}, 0xffff0000, v{vG}")
    for a in range(3):
        if a: A.wait(lg=rt[a])
        for p in range(8):
            A(f"v_pk_add_f32 v[{AC2+2*p}:{AC2+2*p+1}], v[{AC2+2*p}:{AC2+2*p+1}], v[{PR+16*a+2*p}:{PR+16*a+2*p+1}]")
    for p in range(8):
        A(f"v_pk_mul_f32 v[{AC2+2*p}:{AC2+2*p+1}], v[{AC2+2*p}:{AC2+2*p+1}], v[{TMP+14}:{TMP+15}] op_sel_hi:[1,0]")
    A.wait(lg=at)
    for p in range(8):
        A(f"v_lshlrev_b32 v{PR+2*p}, 16, v{AT+p}\nv_and_b32 v{PR+2*p+1}, 0xffff0000, v{AT+p}")
    for p in range(8):
        A(f"v_pk_fma_f32 v[{AC2+2*p}:{AC2+2*p+1}], v[{PR+2*p}:{PR+2*p+1}], v[{TMP+12}:{TMP+13}], v[{AC2+2*p}:{AC2+2*p+1}] op_sel_hi:[1,0,1]")
    for p in range(8):
        A(f"v_cvt_pk_bf16_f32 v{AT+8+p}, v{AC2+2*p}, v{AC2+2*p+1}")
    A(f"buffer_store_dwordx4 v[{AT+8}:{AT+11}], v{TMP+10}, s[{sO}:{sO+3}], s{sT2} offen")
    A(f"buffer_store_dwordx4 v[{AT+12}:{AT+15}], v{TMP+10}, s[{sO}:{sO+3}], s{sT2} offen offset:16")
    P.stamp("end")
    P.flush(TMP)
    A("s_endpgm")
    return P.names

def gate_issue(A, vx, vw, vt):
    srd(A, sW, 30, 896)
    A(f"s_and_b32 s{sT0}, s{sM2}, 28\ns_lshl_b32 s{sT0}, s{sT0}, 6\ns_lshl_b32 s{sT1}, s{sSLOT}, 3\ns_add_u32 s{sT0}, s{sT0}, s{sT1}\ns_lshl_b32 s{sT1}, s{sWAVE}, 1\ns_add_u32 s{sXb}, s{sT0}, s{sT1}")
    A(f"s_mul_i32 s{sT2}, s{sXb}, 896")
    A(f"v_lshlrev_b32 v{vt}, 4, v0\nv_cmp_gt_u32 vcc, 56, v0\nv_mov_b32 v{vt+1}, 0x7ffff000\nv_cndmask_b32 v{vt}, v{vt+1}, v{vt}, vcc")
    A.vmop(f"buffer_load_dwordx4 v[{vx}:{vx+3}], v{vt}, s[{sX}:{sX+3}], s{sT2} offen")
    A.vmop(f"buffer_load_dwordx4 v[{vx+4}:{vx+7}], v{vt}, s[{sX}:{sX+3}], s{sT2} offen offset:896")
    return A.vmop(f"buffer_load_dwordx4 v[{vw}:{vw+3}], v{vt}, s[{sW}:{sW+3}], 0 offen")

def gate_compute(A, vx, vw, vt):
    a0, a1 = vt + 4, vt + 5
    A(f"v_mov_b32 v{a0}, 0\nv_mov_b32 v{a1}, 0")
    for k in range(4):
        A(f"v_dot2_f32_bf16 v{a0}, v{vx+k}, v{vw+k}, v{a0}")
        A(f"v_dot2_f32_bf16 v{a1}, v{vx+4+k}, v{vw+k}, v{a1}")
    A("s_nop 2")
    for m in ("row_shr:1 row_mask:0xf bank_mask:0xf bound_ctrl:0", "row_shr:2 row_mask:0xf bank_mask:0xf bound_ctrl:0", "row_shr:4 row_mask:0xf bank_mask:0xf bound_ctrl:0",
              "row_shr:8 row_mask:0xf bank_mask:0xf bound_ctrl:0", "row_bcast:15 row_mask:0xa bank_mask:0xf", "row_bcast:31 row_mask:0xc bank_mask:0xf"):
        A(f"v_add_f32_dpp v{a0}, v{a0}, v{a0} {m}")
        A(f"v_add_f32_dpp v{a1}, v{a1}, v{a1} {m}")
    t = vt + 6
    A(f"v_cvt_pk_bf16_f32 v{t}, v{a0}, v{a1}")
    A(f"v_lshlrev_b32 v{a0}, 16, v{t}\nv_and_b32 v{a1}, 0xffff0000, v{t}")
    A(f"v_mul_f32 v{a0}, {NLOG2E}, v{a0}\nv_mul_f32 v{a1}, {NLOG2E}, v{a1}")
    A(f"v_exp_f32 v{a0}, v{a0}\nv_exp_f32 v{a1}, v{a1}")
    A(f"v_add_f32 v{a0}, 1.0, v{a0}\nv_add_f32 v{a1}, 1.0, v{a1}")
    A(f"v_rcp_f32 v{a0}, v{a0}\nv_rcp_f32 v{a1}, v{a1}")
    A(f"v_cvt_pk_bf16_f32 v{t}, v{a0}, v{a1}")
    A(f"v_lshlrev_b32 v{a0}, 16, v{t}\nv_and_b32 v{a1}, 0xffff0000, v{t}")
    A(f"v_sub_f32 v{t}, 1.0, v{a0}\nv_sub_f32 v{t+1}, 1.0, v{a1}")
    A(f"v_cvt_pk_bf16_f32 v{vt}, v{a0}, v{t}\nv_cvt_pk_bf16_f32 v{vt+2}, v{a1}, v{t+1}")
    A(f"v_mov_b32 v{vt+1}, s{sEP}\nv_mov_b32 v{vt+3}, s{sEP}")
    A(f"s_lshl_b32 s{sT0}, s{sXb}, 3\ns_add_u32 s{sT0}, s{sT0}, {WS_GATE}")
    A(f"v_mov_b32 v{t}, 0x7ffff000\nv_writelane_b32 v{t}, s{sT0}, 63")
    return A.vmop(f"buffer_store_dwordx4 v[{vt}:{vt+3}], v{t}, s[{sWS}:{sWS+3}], 0 offen sc1")

def cmul(A, d, a, b, t):
    A(f"v_pk_mul_f32 v[{t}:{t+1}], v[{a}:{a+1}], v[{b}:{b+1}] op_sel_hi:[1,0]")
    A(f"v_pk_fma_f32 v[{d}:{d+1}], v[{a}:{a+1}], v[{b}:{b+1}], v[{t}:{t+1}] op_sel:[1,1,0] op_sel_hi:[0,1,1] neg_lo:[1,0,0]")

def ssm_role(A, opt):
    REG = 17408; PIECE = 69632; PITCH = 272; CP = 4160
    vPROF = 255
    P = Prof(A, opt.prof, vPROF)
    sP, sCH, sHW, sD, sDT, sDS, sRND, sRB = 92, 93, 94, 95, 96, 97, 98, 99
    A.label("L_ssm")
    A(f"s_sub_u32 s{sP}, s2, 256\ns_lshr_b32 s{sCH}, s{sWAVE}, 1\ns_and_b32 s{sHW}, s{sWAVE}, 1")
    A(f"s_lshl_b32 s{sD}, s{sP}, 1\ns_add_u32 s{sD}, s{sD}, s{sCH}")
    A(f"s_lshl_b32 s{sT0}, s{sP}, 2")
    A(f"s_load_dword s{sDT}, s[18:19], s{sT0}\ns_load_dword s{sDS}, s[20:21], s{sT0}")
    A("v_lshrrev_b32 v1, 3, v0\nv_mul_u32_u24 v2, 896, v1\nv_and_b32 v3, 7, v0\nv_lshl_add_u32 v2, v3, 4, v2\nv_add_u32 v3, 6144, v2")
    A(f"s_lshl_b32 s{sT0}, s{sM2}, 2\ns_add_u32 s{sT0}, s{sT0}, s{sWAVE}\ns_mul_i32 s{sT2}, s{sT0}, 14336\ns_lshl_b32 s{sT1}, s{sN2}, 7\ns_add_u32 s{sT2}, s{sT2}, s{sT1}")
    A(f"s_lshl_b32 s{sT0}, s{sWAVE}, 11\ns_add_u32 m0, s{sT0}, {PIECE}")
    A.vmop(f"buffer_load_dwordx4 v2, s[{sX}:{sX+3}], s{sT2} offen lds")
    ptok = A.vmop(f"buffer_load_dwordx4 v3, s[{sX}:{sX+3}], s{sT2} offen offset:1024 lds")
    gtok = gate_issue(A, 16, 24, 28)
    RAW = 8
    A(f"s_lshl_b32 s{sT0}, s{sP}, 10\ns_lshl_b32 s{sT1}, s{sWAVE}, 8\ns_add_u32 s{sT0}, s{sT0}, s{sT1}")
    A(f"v_lshlrev_b32 v4, 2, v0\nv_add_u32 v5, s{sT0}, v4")
    for k in range(6):
        rtok = A.vmop(f"global_load_dword v{RAW+k}, v5, s[{6+2*k}:{7+2*k}]")
    A(f"s_mul_i32 s{sRB}, s{sWAVE}, {REG}")
    vWR, vFR = 6, 7
    A(f"v_add_u32 v{vWR}, s{sRB}, v4")
    A(f"v_and_b32 v36, 31, v0\nv_mul_u32_u24 v{vFR}, {PITCH}, v36\nv_lshrrev_b32 v37, 5, v0\nv_lshl_add_u32 v{vFR}, v37, 4, v{vFR}\nv_add_u32 v{vFR}, s{sRB}, v{vFR}")
    A("v_lshrrev_b32 v36, 4, v0\nv_bfe_u32 v37, v0, 2, 2\nv_and_b32 v38, 3, v0")
    A(f"v_lshlrev_b32 v39, 10, v36\nv_lshl_add_u32 v39, v37, 7, v39\nv_lshl_add_u32 v39, v38, 3, v39")
    A(f"s_lshl_b32 s{sT0}, s{sWAVE}, 5\ns_add_u32 s{sT0}, s{sT0}, {PIECE}\nv_add_u32 v39, s{sT0}, v39")
    A("v_and_b32 v40, 15, v0\nv_lshlrev_b32 v40, 12, v40\nv_lshl_add_u32 v40, v36, 4, v40")
    A("s_waitcnt lgkmcnt(0)")
    epoch_finish(A)
    A(f"s_lshl_b32 s{sT0}, s{sCH}, 4\ns_lshr_b32 s{sDT}, s{sDT}, s{sT0}\ns_lshl_b32 s{sDT}, s{sDT}, 16\ns_lshr_b32 s{sDS}, s{sDS}, s{sT0}\ns_lshl_b32 s{sDS}, s{sDS}, 16")
    A(f"v_mov_b32 v41, {LOG2E}\nv_mov_b32 v45, s{sDT}\nv_mul_f32 v42, v45, v41\nv_fma_f32 v43, v45, v41, -v42")
    A("v_fmac_f32 v43, 0x32a57060, v45")
    A("v_exp_f32 v42, v42\nv_mul_f32 v43, 0x3f317218, v43")
    A("v_fma_f32 v42, v42, v43, v42\nv_cvt_pk_bf16_f32 v42, v42, v42\nv_lshlrev_b32 v42, 16, v42")
    A(f"v_readfirstlane_b32 s{sDT}, v42")
    P.stamp("setup")
    A.wait(vm=ptok)
    A("s_barrier")
    for e in range(2):
        A.lgop(f"ds_read_b64_tr_b16 v[{48+4*e}:{49+4*e}], v39 offset:{e*4096}")
        t = A.lgop(f"ds_read_b64_tr_b16 v[{50+4*e}:{51+4*e}], v39 offset:{e*4096+512}")
    A(f"s_lshl_b32 s{sT0}, s{sN2}, 2\ns_add_u32 s{sT0}, s{sT0}, s{sWAVE}\ns_lshl_b32 s{sT0}, s{sT0}, 16\ns_lshl_b32 s{sT1}, s{sM2}, 7\ns_add_u32 s{sT0}, s{sT0}, s{sT1}\ns_add_u32 s{sT2}, s{sT0}, {WS_UT}")
    A.wait(lg=t)
    A.vmop(f"buffer_store_dwordx4 v[48:51], v40, s[{sWS}:{sWS+3}], s{sT2} offen sc1")
    A.vmop(f"buffer_store_dwordx4 v[52:55], v40, s[{sWS}:{sWS+3}], s{sT2} offen offset:64 sc1")
    A.wait(vm=gtok)
    gate_compute(A, 16, 24, 28)
    P.stamp("piece")
    vF1, vF3, vEp = 14, 15, 5
    A(f"s_lshl_b32 s{sT0}, s{sN2}, 7\ns_lshl_b32 s{sT1}, s{sM2}, 2\ns_add_u32 s{sT0}, s{sT0}, s{sT1}\ns_add_u32 s{sT0}, s{sT0}, {WS_F1}")
    A(f"s_lshl_b32 s{sT1}, s{sP}, 2\ns_add_u32 s{sT1}, s{sT1}, {WS_F3}")
    A(f"s_cmp_eq_u32 s{sWAVE}, 0\ns_cselect_b32 s{sT0}, s{sT0}, 0x7ffff000\ns_cselect_b32 s{sT1}, s{sT1}, 0x7ffff000")
    A.wait(vm=rtok)
    A(f"v_mov_b32 v{vF1}, 0x7ffff000\nv_mov_b32 v{vF3}, 0x7ffff000\nv_writelane_b32 v{vF1}, s{sT0}, 0\nv_writelane_b32 v{vF3}, s{sT1}, 0\nv_mov_b32 v{vEp}, s{sEP}")
    KA = 64
    KF = 96
    for r in range(16): A(f"v_mov_b32 v{KA+r}, 0")
    A(f"s_mov_b32 s{sRND}, 0")
    A.label("L_kround")
    U = 16
    for k in range(6): A(f"v_lshlrev_b32 v{U+k}, 16, v{RAW+k}")
    for k in range(6): A(f"v_lshrrev_b32 v{RAW+k}, 16, v{RAW+k}")
    for k in range(4): A(f"v_mul_f32 v{U+k}, s{sDT}, v{U+k}")
    A(f"v_mul_f32 v{U}, {LOG2E}, v{U}\nv_mul_f32 v{U+1}, 0.15915494, v{U+1}")
    E1, E8, E256, W0, T = 22, 24, 26, 28, 30
    cmul(A, W0, U + 4, U + 2, T)
    for (E, sh) in ((E1, 0), (E8, 3), (E256, 8)):
        if sh:
            A(f"v_ldexp_f32 v32, v{U}, {sh}\nv_ldexp_f32 v33, v{U+1}, {sh}\nv_exp_f32 v32, v32\nv_fract_f32 v33, v33")
        else:
            A(f"v_exp_f32 v32, v{U}\nv_fract_f32 v33, v{U+1}")
        A(f"v_cos_f32 v{E}, v33\nv_sin_f32 v{E+1}, v33")
        A(f"v_pk_mul_f32 v[{E}:{E+1}], v[{E}:{E+1}], v[32:33] op_sel_hi:[1,0]")
    pk = [0]
    def put(reg, rows, neg):
        o = 56 + (pk[0] % 8); pk[0] += 1
        A(f"v_cvt_pk_bf16_f32 v{o}, v{reg}, {'-' if neg else ''}v{reg+1}")
        for r in rows: A(f"ds_write_b32 v{vWR}, v{o} offset:{r*PITCH}")
    prow = {0:[0],1:[1],2:[2],3:[3],4:[4],5:[5],6:[6],7:[7],256:[8,9],258:[10],260:[11,12,13],262:[14],264:[15],
            512:[16],516:[17],520:[18,19],768:[20],772:[21],776:[22,23],1024:[24],1032:[25],1280:[26],1288:[27],1536:[28],1544:[29],1792:[30],1800:[31]}
    qs, ps = [], []
    Q = 34
    qs.append(lambda: (A("v_mov_b32 v55, 0x3f80"), A(f"ds_write_b32 v{vWR}, v55 offset:{32*PITCH}")))
    qs.append(lambda: put(E8, [33], False))
    for j in range(2, 32):
        qs.append(lambda j=j: (cmul(A, Q, E8 if j == 2 else Q, E8, 36), put(Q, [32 + j], False)))
    PC, P2, P4, P6, P8 = 38, 40, 42, 44, 46
    ps.append(lambda: put(W0, prow[0], True))
    src = W0
    for l in range(1, 8):
        dst = {2: P2, 4: P4, 6: P6}.get(l, PC)
        ps.append(lambda l=l, src=src, dst=dst: (cmul(A, dst, src, E1, 48), put(dst, prow[l], True)))
        src = dst
    ps.append(lambda: cmul(A, P8, W0, E8, 48))
    for (reg, base, n) in ((P2, 2, 1), (P6, 6, 1), (P4, 4, 3), (W0, 0, 7), (P8, 8, 7)):
        for k in range(1, n + 1):
            ps.append(lambda reg=reg, l=base + 256 * k: (cmul(A, reg, reg, E256, 48), put(reg, prow[l], True)))
    for i in range(max(len(qs), len(ps))):
        if i < len(qs): qs[i]()
        if i < len(ps): ps[i]()
    A("s_waitcnt lgkmcnt(0)")
    kt = []
    def krd(ks):
        A.lgop(f"ds_read_b128 v[{KF+8*ks}:{KF+8*ks+3}], v{vFR} offset:{ks*32}")
        kt.append(A.lgop(f"ds_read_b128 v[{KF+8*ks+4}:{KF+8*ks+7}], v{vFR} offset:{32*PITCH + ks*32}"))
    for ks in range(6): krd(ks)
    for ks in range(8):
        A.wait(lg=kt[ks])
        A(f"v_mfma_f32_32x32x16_bf16 v[{KA}:{KA+15}], v[{KF+8*ks}:{KF+8*ks+3}], v[{KF+8*ks+4}:{KF+8*ks+7}], v[{KA}:{KA+15}]")
        if ks + 6 < 8: krd(ks + 6)
    A(f"s_cmp_eq_u32 s{sRND}, 1\ns_cbranch_scc1 L_kdone")
    A(f"s_mov_b32 s{sRND}, 1")
    A("s_waitcnt vmcnt(0)\ns_barrier")
    A(f"buffer_store_dword v{vEp}, v{vF1}, s[{sWS}:{sWS+3}], 0 offen sc1")
    A("s_branch L_kround")
    A.label("L_kdone")
    A("s_nop 7")
    P.stamp("kgen")
    sUB, sKB, sXB = sXo, sWo, sDo
    A(f"s_mul_i32 s{sUB}, s{sCH}, {2*REG}\ns_add_u32 s{sXB}, s{sUB}, {REG}\ns_add_u32 s{sKB}, s{sXB}, 4096")
    A(f"v_lshlrev_b32 v4, 4, v0\nv_add_u32 v16, s{sXB}, v4")
    A(f"s_cmp_eq_u32 s{sHW}, 0\ns_cbranch_scc1 L_even1")
    for k in range(4): A(f"ds_write_b128 v16, v[{KA+4*k}:{KA+4*k+3}] offset:{k*1024}")
    A(f"s_lshr_b32 s{sT0}, s{sP}, 5\ns_lshl_b32 s{sHo}, s{sT0}, 7\ns_add_u32 s{sHo}, s{sHo}, {WS_F1}")
    A("s_waitcnt lgkmcnt(0)")
    A("s_barrier")
    poll_issue(A, sHo, 32)
    poll_check(A, sHo, 32)
    P.stamp("flagU")
    A(f"s_lshl_b32 s{sT2}, s{sD}, 12\ns_add_u32 s{sT2}, s{sT2}, {WS_UT}")
    for k in range(4): A(f"buffer_load_dwordx4 v[{20+4*k}:{23+4*k}], v4, s[{sWS}:{sWS+3}], s{sT2} offen offset:{k*1024} sc1")
    A(f"v_lshrrev_b32 v17, 4, v0\nv_mul_u32_u24 v17, {CP}, v17\nv_and_b32 v18, 15, v0\nv_lshl_add_u32 v17, v18, 2, v17\nv_add_u32 v17, s{sUB}, v17\nv_mov_b32 v18, 0")
    A("ds_write_b32 v17, v18")
    A(f"v_add_u32 v17, s{sUB}, v4")
    A("s_waitcnt vmcnt(0)")
    for k in range(4): A(f"ds_write_b128 v17, v[{20+4*k}:{23+4*k}] offset:{32 + k*1024}")
    for k in range(4): A(f"ds_read_b32 v{36+k}, v17 offset:{28 + k*1024}")
    for k in range(4): A(f"v_add_u32 v{56+k}, {2*CP + 36 + k*1024}, v17\nv_add_u32 v{60+k}, {3*CP + 36 + k*1024}, v17")
    for k in range(4):
        A(f"ds_write2_b32 v{56+k}, v{20+4*k}, v{21+4*k} offset0:0 offset1:1")
        A(f"ds_write2_b32 v{56+k}, v{22+4*k}, v{23+4*k} offset0:2 offset1:3")
    A("s_waitcnt lgkmcnt(8)")
    for k in range(4):
        A(f"v_alignbit_b32 v{40+4*k}, v{20+4*k}, v{36+k}, 16")
        for i in range(1, 4): A(f"v_alignbit_b32 v{40+4*k+i}, v{20+4*k+i}, v{20+4*k+i-1}, 16")
    for k in range(4):
        A(f"ds_write_b128 v17, v[{40+4*k}:{43+4*k}] offset:{CP + 32 + k*1024}")
        A(f"ds_write2_b32 v{60+k}, v{40+4*k}, v{41+4*k} offset0:0 offset1:1")
        A(f"ds_write2_b32 v{60+k}, v{42+4*k}, v{43+4*k} offset0:2 offset1:3")
    A("s_branch L_join1")
    A.label("L_even1")
    A("s_barrier")
    for k in range(4): A(f"ds_read_b128 v[{20+4*k}:{23+4*k}], v16 offset:{k*1024}")
    A(f"v_lshlrev_b32 v17, 3, v0\nv_add_u32 v17, s{sKB}, v17\nv_mov_b32 v18, 0\nv_mov_b32 v19, 0\nds_write_b64 v17, v[18:19]")
    A(f"v_and_b32 v36, 31, v0\nv_lshlrev_b32 v36, 4, v36\nv_add_u32 v36, s{sKB}, v36\nv_lshrrev_b32 v37, 5, v0")
    A("v_lshl_add_u32 v38, v37, 3, v36\nv_lshl_add_u32 v39, v37, 9, v36\nv_lshl_add_u32 v40, v37, 10, v36")
    A("v_and_b32 v41, 1, v0\nv_cmp_eq_u32 vcc, 1, v41")
    A("s_waitcnt lgkmcnt(1)")
    for p in range(8): A(f"v_pk_add_f32 v[{KA+2*p}:{KA+2*p+1}], v[{KA+2*p}:{KA+2*p+1}], v[{20+2*p}:{21+2*p}]")
    r = lambda i: f"v{KA+i}"
    A(f"v_cvt_pk_bf16_f32 v20, {r(0)}, {r(1)}\nv_cvt_pk_bf16_f32 v21, {r(2)}, {r(3)}\nv_cvt_pk_bf16_f32 v22, {r(4)}, {r(5)}\nv_cvt_pk_bf16_f32 v23, {r(6)}, {r(7)}")
    A("ds_write_b64 v38, v[20:21] offset:512\nds_write_b64 v38, v[22:23] offset:1024")
    A(f"v_cvt_pk_bf16_f32 v24, {r(8)}, {r(8)}\nv_cvt_pk_bf16_f32 v25, {r(8)}, {r(9)}\nv_cvt_pk_bf16_f32 v26, {r(9)}, {r(9)}\nv_cvt_pk_bf16_f32 v27, {r(10)}, {r(10)}")
    A("ds_write_b128 v39, v[24:27] offset:1536")
    for e in range(2):
        a0, a8, o = 12 + 2 * e, 13 + 2 * e, 28 + 4 * e
        A(f"v_cndmask_b32 v41, {r(a0)}, {r(a8)}, vcc")
        A(f"v_cvt_pk_bf16_f32 v{o}, {r(a0)}, {r(a0)}\nv_cvt_pk_bf16_f32 v{o+1}, {r(a0)}, {r(a0)}\nv_cvt_pk_bf16_f32 v{o+2}, v41, {r(a8)}\nv_cvt_pk_bf16_f32 v{o+3}, {r(a8)}, {r(a8)}")
        A(f"ds_write_b128 v40, v[{o}:{o+3}] offset:{2560 + 512*e}")
    if opt.prof: P.n -= 1; P.names.pop(); P.stamp("flagU")
    A.label("L_join1")
    vU, vK = 6, 7
    A("v_lshrrev_b32 v16, 5, v0\nv_bfe_u32 v17, v0, 4, 1\nv_bfe_u32 v18, v0, 2, 2\nv_and_b32 v19, 3, v0")
    A(f"v_mul_u32_u24 v{vU}, {CP}, v18\nv_lshl_add_u32 v{vU}, v16, 5, v{vU}\nv_lshl_add_u32 v{vU}, v19, 3, v{vU}\nv_lshlrev_b32 v8, 4, v17\nv_sub_u32 v{vU}, v{vU}, v8")
    A(f"s_lshl_b32 s{sT0}, s{sHW}, 8\ns_add_u32 s{sT1}, s{sUB}, s{sT0}\ns_add_u32 s{sT1}, s{sT1}, 24\nv_add_u32 v{vU}, s{sT1}, v{vU}")
    A(f"v_and_b32 v9, 15, v0\nv_sub_u32 v9, v9, v16\nv_lshlrev_b32 v9, 5, v9\nv_add_u32 v{vK}, v9, v8")
    A(f"s_sub_u32 s{sT1}, s{sKB}, s{sT0}\ns_add_u32 s{sT1}, s{sT1}, {512-192}\nv_add_u32 v{vK}, s{sT1}, v{vK}")
    A("s_waitcnt lgkmcnt(0)\ns_barrier")
    P.stamp("prep")
    CA = 16; SET = [64, 128]
    def loads(rho):
        b = SET[rho & 1]; L = []
        for i in range(8):
            L.append(f"ds_read_b64_tr_b16 v[{b+4*i}:{b+4*i+1}], v{vU} offset:{64*rho + 512*i + 8}")
            L.append(f"ds_read_b64_tr_b16 v[{b+4*i+2}:{b+4*i+3}], v{vU} offset:{64*rho + 512*i}")
            L.append(f"ds_read_b128 v[{b+32+4*i}:{b+32+4*i+3}], v{vK} offset:{192 - 64*rho + 512*i}")
        return L
    for x in loads(0): A(x)
    first = set()
    for rho in range(4):
        A("s_waitcnt lgkmcnt(0)")
        b = SET[rho & 1]
        nxt = loads(rho + 1) if rho < 3 else []
        pairs = [(be, de) for be in range(8) for de in range(8 - be)]
        for (be, de) in pairs:
            a = CA + 4 * (be + de)
            cin = f"v[{a}:{a+3}]" if (be + de) in first else "0"
            first.add(be + de)
            A(f"v_mfma_f32_16x16x32_bf16 v[{a}:{a+3}], v[{b+4*be}:{b+4*be+3}], v[{b+32+4*de}:{b+32+4*de+3}], {cin}")
            if nxt: A(nxt.pop(0))
    P.stamp("conv")
    A(f"v_lshlrev_b32 v4, 4, v0\nv_add_u32 v8, s{sXB}, v4")
    A("v_and_b32 v9, 15, v0\nv_lshlrev_b32 v9, 5, v9\nv_lshrrev_b32 v10, 4, v0\nv_lshl_add_u32 v9, v10, 3, v9")
    A(f"s_lshl_b32 s{sT0}, s{sHW}, 11\ns_add_u32 s{sT1}, s{sUB}, s{sT0}\nv_add_u32 v10, s{sT1}, v9")
    A(f"s_lshl_b32 s{sT2}, s{sD}, 12\ns_add_u32 s{sT2}, s{sT2}, s{sT0}\ns_add_u32 s{sT2}, s{sT2}, {WS_AT}")
    for k in range(4): A(f"ds_read_b64 v[{80+2*k}:{81+2*k}], v10 offset:{32 + 512*k}")
    A(f"s_cmp_eq_u32 s{sHW}, 0\ns_cbranch_scc1 L_even2")
    for k in range(4): A(f"ds_write_b128 v8, v[{CA+4*k}:{CA+4*k+3}] offset:{12800 + k*1024}")
    A("s_waitcnt lgkmcnt(0)\ns_barrier")
    for k in range(4): A(f"ds_read_b128 v[{64+4*k}:{67+4*k}], v8 offset:{8704 + k*1024}")
    for k in range(16): A(f"v_mov_b32 v{CA+k}, v{CA+16+k}")
    A("s_branch L_join2")
    A.label("L_even2")
    for k in range(4): A(f"ds_write_b128 v8, v[{CA+16+4*k}:{CA+16+4*k+3}] offset:{8704 + k*1024}")
    A("s_waitcnt lgkmcnt(0)\ns_barrier")
    for k in range(4): A(f"ds_read_b128 v[{64+4*k}:{67+4*k}], v8 offset:{12800 + k*1024}")
    A.label("L_join2")
    for k in range(8): A(f"v_lshlrev_b32 v{96+2*k}, 16, v{80+k}\nv_and_b32 v{97+2*k}, 0xffff0000, v{80+k}")
    for k in range(16): A(f"v_fmac_f32 v{CA+k}, s{sDS}, v{96+k}")
    A("s_waitcnt lgkmcnt(0)")
    for p in range(8): A(f"v_pk_add_f32 v[{CA+2*p}:{CA+2*p+1}], v[{CA+2*p}:{CA+2*p+1}], v[{64+2*p}:{65+2*p}]")
    for p in range(8): A(f"v_cvt_pk_bf16_f32 v{80+p}, v{CA+2*p}, v{CA+2*p+1}")
    for k in range(4): A(f"buffer_store_dwordx2 v[{80+2*k}:{81+2*k}], v9, s[{sWS}:{sWS+3}], s{sT2} offen offset:{512*k} sc1")
    A("s_waitcnt vmcnt(0)\ns_barrier")
    A(f"buffer_store_dword v{vEp}, v{vF3}, s[{sWS}:{sWS+3}], 0 offen sc1")
    P.stamp("end")
    P.flush(4)
    A("s_endpgm")
    return P.names

def aux_role(A, opt):
    A.label("L_aux")
    gtok = gate_issue(A, 16, 24, 28)
    A("s_waitcnt lgkmcnt(0)")
    epoch_finish(A)
    A.wait(vm=gtok)
    gate_compute(A, 16, 24, 28)
    A(f"s_cmp_lg_u32 s2, 224\ns_cbranch_scc1 L_end\ns_cmp_lg_u32 s{sWAVE}, 0\ns_cbranch_scc1 L_end")
    A(f"s_mov_b32 s{sSPIN}, 0")
    A("v_and_b32 v1, 15, v0\nv_min_u32 v1, 13, v1\nv_lshrrev_b32 v2, 4, v0\nv_lshlrev_b32 v2, 7, v2\nv_lshl_add_u32 v1, v1, 2, v2")
    A("v_lshlrev_b32 v2, 4, v0\nv_add_u32 v2, 4, v2")
    A.label("L_upd")
    A(f"s_mov_b32 s{sT0}, {WS_F2}")
    for k in range(4): A(f"buffer_load_dword v{40+k}, v1, s[{sWS}:{sWS+3}], s{sT0} offen offset:{512*k} sc1")
    for k in range(16):
        if k % 4 == 0: A(f"s_mov_b32 s{sT0}, {WS_GATE + 1024*k}")
        A(f"buffer_load_dword v{44+k}, v2, s[{sWS}:{sWS+3}], s{sT0} offen offset:{1024*(k%4)} sc1")
    A("s_waitcnt vmcnt(0)")
    A("v_mov_b32 v3, 0")
    for k in range(20): A(f"v_xor_b32 v4, s{sEP}, v{40+k}\nv_or_b32 v3, v3, v4")
    A("v_cmp_ne_u32 vcc, 0, v3")
    A("s_cbranch_vccz L_upd_ok")
    A(f"s_add_u32 s{sSPIN}, s{sSPIN}, 1\ns_cmp_ge_u32 s{sSPIN}, {SPIN_MAX}\ns_cbranch_scc1 L_upd_ok")
    A("s_sleep 8\ns_branch L_upd")
    A.label("L_upd_ok")
    A(f"v_mov_b32 v3, 0x7ffff000\nv_writelane_b32 v3, 0, 0\nv_mov_b32 v4, s{sEP}")
    A(f"buffer_store_dword v4, v3, s[{sWS}:{sWS+3}], 0 offen sc1")
    A("s_endpgm")

def build(opt):
    A = Asm()
    A(f"s_cmp_ge_u32 s2, {NWG}\ns_cbranch_scc1 L_end")
    A("s_load_dwordx16 s[4:19], s[0:1], 0\ns_load_dwordx16 s[20:35], s[0:1], 64\ns_load_dwordx2 s[36:37], s[0:1], 128")
    A(f"v_lshrrev_b32 v1, 6, v0\nv_and_b32 v0, 63, v0\nv_readfirstlane_b32 s{sWAVE}, v1")
    A(f"s_and_b32 s{sXC}, s2, 7\ns_bfe_u32 s{sSLOT}, s2, 0x50003")
    A(f"s_and_b32 s{sT0}, s{sXC}, 3\ns_lshl_b32 s{sT0}, s{sT0}, 3\ns_lshr_b32 s{sT1}, s{sXC}, 2\ns_lshl_b32 s{sT1}, s{sT1}, 2\ns_add_u32 s{sT0}, s{sT0}, s{sT1}")
    A(f"s_and_b32 s{sT1}, s{sSLOT}, 3\ns_add_u32 s{sM2}, s{sT0}, s{sT1}\ns_lshr_b32 s{sN2}, s{sSLOT}, 2")
    A("s_waitcnt lgkmcnt(0)")
    A(f"s_load_dword s{sEP}, s[36:37], 0 glc")
    srd(A, sX, 4, 1835008)
    srd(A, sWS, 36, WS_SPAN)
    A("s_cmp_ge_u32 s2, 256\ns_cbranch_scc1 L_ssm\ns_cmp_ge_u32 s2, 224\ns_cbranch_scc1 L_aux")
    names = {}
    names["gemm"] = gemm_role(A, opt)
    names["ssm"] = ssm_role(A, opt)
    aux_role(A, opt)
    A.label("L_end")
    A("s_endpgm")
    body, nn = hazard_pass(A.lines)
    ref = open(f"cdna_kernels/{NAME}.s.ref").read().split("\n")
    head = [l for l in ref if l.startswith(";") and "@launch" not in l]
    out = head + [f"; @launch grid=({NWG},1,1) block=(256,1,1) lds=81920",
                  '.amdgcn_target "amdgcn-amd-amdhsa--gfx950"', ".text", f".globl {NAME}_kernel", ".p2align 8",
                  f".type {NAME}_kernel,@function", f"{NAME}_kernel:"]
    out += [("    " + l if not l.endswith(":") else l) for l in body]
    out += ['.section .rodata,"a"', ".p2align 6", f".amdhsa_kernel {NAME}_kernel",
            "  .amdhsa_next_free_vgpr 256", "  .amdhsa_next_free_sgpr 102", "  .amdhsa_accum_offset 256",
            "  .amdhsa_group_segment_fixed_size 0", "  .amdhsa_kernarg_size 136", "  .amdhsa_user_sgpr_count 2",
            "  .amdhsa_user_sgpr_kernarg_segment_ptr 1", "  .amdhsa_system_sgpr_workgroup_id_x 1", ".end_amdhsa_kernel"]
    return "\n".join(out) + "\n", names, nn

if __name__ == "__main__":
    opt = Opt()
    path = sys.argv[1] if len(sys.argv) > 1 else f"cdna_kernels/{NAME}.s"
    for kv in sys.argv[2:]:
        k, val = kv.split("=")
        setattr(opt, k, int(val))
    txt, names, nn = build(opt)
    open(path, "w").write(txt)
    import json
    open(path + ".names.json", "w").write(json.dumps(names))
    print("wrote", path, "lines", txt.count("\n"), "nops inserted", nn)
```

```python
import sys
from asmlib import *

NAME = "gated_mix__ssm_conv_s4__swiglu_ffn__prompt"
WS_F1, WS_F2, WS_F3, WS_GATE = 0x1000, 0x2000, 0x4000, 0x8000
WS_PROF = 0x40000
WS_UT, WS_AT, WS_H = 0x100000, 0x300000, 0x500000
WS_SPAN = 0x1000000
NWG = 480
SPIN_MAX = 20000
LOG2E = 0x3fb8aa3b
NLOG2E = 0xbfb8aa3b

class Opt:
    prof = False
    rot1 = True
    rot2 = True
    pdh = 4
    nossm = False
    pk = False
    lightprof = False
    kprio = 0
    cprio = 0
    gprio = 0
    spread = 1

sX, sW, sWd, sWS, sO, sH = 40, 44, 48, 52, 56, 68
sWAVE, sM, sJ, sEP, sM2, sN2, sXC, sSLOT = 60, 61, 62, 63, 64, 65, 66, 67
sT0, sT1, sT2, sT3 = 72, 73, 74, 75
sK0 = 76
sXo, sWo, sDo, sHo, sLB = 78, 79, 80, 81, 82
sXb, sWb, sHst = 83, 84, 85
sSPIN = 86
sEP2 = 88
sPROF = 4

def srd(A, d, lo, size):
    A(f"s_mov_b32 s{d}, s{lo}\ns_mov_b32 s{d+1}, s{lo+1}\ns_mov_b32 s{d+2}, {size}\ns_mov_b32 s{d+3}, 0x20000")

class Prof:
    def __init__(self, A, on, vreg):
        self.A, self.on, self.vreg, self.n, self.pending = A, on, vreg, 0, False
        self.names = []
    def stamp(self, name):
        if not self.on: return
        A = self.A
        A("s_memrealtime s[90:91]")
        if name in ("setup", "end"): A("s_memtime s[100:101]")
        A("s_waitcnt lgkmcnt(0)")
        if name in ("setup", "end"): A(f"v_writelane_b32 v{self.vreg}, s100, {62 if name == 'setup' else 63}")
        A(f"v_writelane_b32 v{self.vreg}, s90, {self.n}")
        self.names.append(name); self.n += 1
    def flush(self, tmp):
        if not self.on: return
        A = self.A
        A(f"s_lshl_b32 s90, s2, 2\ns_add_u32 s90, s90, s{sWAVE}\ns_lshl_b32 s90, s90, 8\ns_add_u32 s90, s90, {WS_PROF}")
        A(f"v_mbcnt_lo_u32_b32 v{tmp}, -1, 0\nv_mbcnt_hi_u32_b32 v{tmp}, -1, v{tmp}\nv_lshlrev_b32 v{tmp}, 2, v{tmp}")
        A(f"buffer_store_dword v{self.vreg}, v{tmp}, s[{sWS}:{sWS+3}], s90 offen")

def epoch_finish(A):
    A(f"s_mul_i32 s{sEP}, s{sEP}, 0x9E3779B1\ns_add_u32 s{sEP}, s{sEP}, 0x7F4A7C15")
    A(f"s_mov_b32 s{sEP2}, s{sEP}\ns_mov_b32 s{sEP2+1}, s{sEP}")

_uid = [0]
def uid(p):
    _uid[0] += 1; return f"L_{p}{_uid[0]}"

def poll_issue(A, soff, n):
    A(f"s_load_dwordx16 s[4:19], s[36:37], s{soff}")
    if n > 16:
        A(f"s_add_u32 s{sT3}, s{soff}, 64")
        A(f"s_load_dwordx16 s[20:35], s[36:37], s{sT3}")

def poll_check(A, soff, n, vt):
    top, bad, ok = uid("pt"), uid("pb"), uid("po")
    A("s_waitcnt lgkmcnt(0)")
    for i in range(0, n, 2):
        A(f"s_cmp_eq_u64 s[{4+i}:{5+i}], s[{sEP2}:{sEP2+1}]")
        A(f"s_cbranch_scc0 {bad}")
    A(f"s_branch {ok}")
    A.label(bad)
    A(f"s_mov_b32 s{sSPIN}, 0")
    A(f"v_min_u32 v{vt}, {n-1}, v0\nv_lshlrev_b32 v{vt}, 2, v{vt}")
    A.label(top)
    A(f"buffer_load_dword v{vt+1}, v{vt}, s[{sWS}:{sWS+3}], s{soff} offen sc1")
    A("s_waitcnt vmcnt(0)")
    A(f"v_cmp_ne_u32 vcc, s{sEP}, v{vt+1}")
    A(f"s_cbranch_vccz {ok}")
    A(f"s_add_u32 s{sSPIN}, s{sSPIN}, 1\ns_cmp_ge_u32 s{sSPIN}, {SPIN_MAX}\ns_cbranch_scc1 {ok}")
    A("s_sleep 2")
    A(f"s_branch {top}")
    A.label(ok)

def wrap_add(A, reg, step, limit):
    A(f"s_add_u32 s{sT0}, s{reg}, {step}\ns_sub_u32 s{sT1}, s{sT0}, {limit}\ns_cselect_b32 s{reg}, s{sT0}, s{sT1}")

def gemm_role(A, opt):
    vWo, vXo, vXr = 2, 6, 10
    vWr = 224
    vHst, vFlag, vEp = 14, 15, 228
    vPROF = 229
    FB, ACC, XF = 16, 48, 112
    TMP = 232
    P = Prof(A, opt.prof, vPROF)
    A.label("L_gemm")
    if opt.gprio: A(f"s_setprio {opt.gprio}")
    A(f"s_and_b32 s{sT0}, s{sXC}, 3\ns_lshl_b32 s{sT0}, s{sT0}, 2\ns_and_b32 s{sT1}, s{sSLOT}, 3\ns_add_u32 s{sM}, s{sT0}, s{sT1}")
    A(f"s_lshr_b32 s{sT0}, s{sXC}, 2\ns_mul_i32 s{sT0}, s{sT0}, 7\ns_add_u32 s{sJ}, s{sT0}, s{sN2}")
    A(f"s_cmp_lt_u32 s{sWAVE}, 2\ns_cselect_b32 s{sW}, s24, s26\ns_cselect_b32 s{sW+1}, s25, s27\ns_mov_b32 s{sW+2}, 1605632\ns_mov_b32 s{sW+3}, 0x20000")
    srd(A, sWd, 28, 1605632)
    srd(A, sO, 32, 1835008)
    if opt.rot1:
        A(f"s_and_b32 s{sT0}, s{sSLOT}, 3\ns_lshl_b32 s{sT0}, s{sT0}, 1\ns_add_u32 s{sT0}, s{sT0}, s{sN2}")
        A(f"s_sub_u32 s{sT1}, s{sT0}, 7\ns_cselect_b32 s{sT2}, s{sT0}, s{sT1}")
    else:
        A(f"s_mov_b32 s{sT2}, 0")
    A(f"s_lshl_b32 s{sXo}, s{sT2}, 7\ns_mul_i32 s{sWo}, s{sT2}, 229376")
    A(f"s_lshl_b32 s{sT0}, s{sM}, 2\ns_add_u32 s{sT0}, s{sT0}, s{sWAVE}\ns_mul_i32 s{sXb}, s{sT0}, 28672")
    A(f"s_and_b32 s{sT1}, s{sWAVE}, 1\ns_mul_i32 s{sT1}, s{sT1}, 114688\ns_lshl_b32 s{sWb}, s{sJ}, 8\ns_add_u32 s{sWb}, s{sWb}, s{sT1}")
    A(f"s_lshl_b32 s{sLB}, s{sWAVE}, 12")
    A("v_lshrrev_b32 v1, 3, v0")
    A("v_and_b32 v232, 7, v0")
    A("v_lshrrev_b32 v233, 1, v1")
    A("v_and_b32 v234, 1, v233\nv_lshlrev_b32 v234, 2, v234\nv_xor_b32 v234, v234, v232\nv_lshlrev_b32 v234, 4, v234")
    A(f"v_mul_u32_u24 v{vWo}, 3584, v1\nv_add_u32 v{vWo}, v{vWo}, v234")
    for q in range(1, 4): A(f"v_add_u32 v{vWo+q}, {q*27648}, v{vWo}")
    A(f"v_xor_b32 v235, v233, v232\nv_lshlrev_b32 v235, 4, v235")
    A(f"v_mul_u32_u24 v236, 896, v1")
    A(f"v_add_u32 v{vXo}, v236, v235\nv_xor_b32 v235, 64, v235\nv_add_u32 v237, v236, v235")
    A(f"v_add_u32 v{vXo+1}, 6144, v237\nv_add_u32 v{vXo+2}, 12288, v{vXo}\nv_add_u32 v{vXo+3}, 18432, v237")
    vDo = 230
    A(f"v_add_u32 v{vDo}, v236, v234\nv_add_u32 v{vDo+1}, 6144, v{vDo}")

    units = []
    for c in range(7): units += [("X", c), ("W", c)]
    for c in range(7): units += [("V", c)]
    tok = {}
    def issue_unit(u):
        slot = u % 5
        fns = []
        if u < 21:
            kind, c = units[u]
            def pre():
                A(f"s_add_u32 m0, s{sLB}, {slot*16384}")
                if kind == "X":
                    A(f"s_add_u32 s{sT2}, s{sXb}, s{sXo}")
                    wrap_add(A, sXo, 128, 896)
                else:
                    A(f"s_add_u32 s{sT2}, s{sWb}, s{sWo}")
                    wrap_add(A, sWo, 229376, 1605632)
                    if u == 13: A(f"s_add_u32 s{sWb}, s{sWb}, 128")
            fns.append(pre)
            for q in range(4):
                def f(q=q):
                    if kind == "X": t = A.vmop(f"buffer_load_dwordx4 v{vXo+q}, s[{sX}:{sX+3}], s{sT2} offen offset:{q*1024} lds")
                    else: t = A.vmop(f"buffer_load_dwordx4 v{vWo+q}, s[{sW}:{sW+3}], s{sT2} offen offset:{q*1024} lds")
                    tok[u] = t
                fns.append(f)
        else:
            for st in (2 * (u - 21), 2 * (u - 21) + 1):
                fns += issue_wd(st)
        return fns
    dtok = {}
    def issue_wd(st):
        slot = (21 + st // 2) % 5
        def pre():
            A(f"s_add_u32 m0, s{sLB}, {slot*16384 + (st & 1)*2048}")
            A(f"s_mov_b32 s{sT2}, s{sDo}")
            wrap_add(A, sDo, 114688, 1605632)
            if st == 13: A(f"s_add_u32 s{sDo}, s{sDo}, {4*14336}")
        def f(img):
            dtok[st] = A.vmop(f"buffer_load_dwordx4 v{vDo+img}, s[{sWd}:{sWd+3}], s{sT2} offen offset:{img*1024} lds")
        return [pre, lambda: f(0), lambda: f(1)]

    for u in range(5):
        for f in issue_unit(u): f()
    A("v_and_b32 v232, 31, v0\nv_lshrrev_b32 v233, 5, v0")
    A("v_bfe_u32 v234, v0, 1, 3\nv_xor_b32 v234, v234, v233\nv_lshlrev_b32 v234, 4, v234")
    A(f"v_lshl_add_u32 v{vXr}, v232, 7, v234\nv_add_u32 v{vXr}, s{sLB}, v{vXr}")
    for ks in range(1, 4): A(f"v_xor_b32 v{vXr+ks}, {ks*32}, v{vXr}")
    A("v_bfe_u32 v234, v0, 2, 2")
    A("v_lshlrev_b32 v235, 10, v233\nv_lshl_add_u32 v235, v234, 7, v235")
    A("v_bfe_u32 v236, v0, 3, 1\nv_lshl_add_u32 v235, v236, 6, v235")
    A("v_bfe_u32 v236, v0, 4, 1\nv_and_b32 v237, 1, v0\nv_bfe_u32 v238, v0, 1, 1")
    A(f"v_lshl_add_u32 v239, v238, 3, v235")
    A(f"v_lshl_add_u32 v{vWr}, v236, 5, v239\nv_lshl_add_u32 v{vWr}, v237, 4, v{vWr}")
    A(f"v_xor_b32 v{vWr+1}, 64, v{vWr}\nv_add_u32 v{vWr+2}, 0x10000, v{vWr}\nv_add_u32 v{vWr+3}, 0x10000, v{vWr+1}")
    A(f"v_lshl_add_u32 v1, v237, 5, v239\nv_lshl_add_u32 v1, v236, 4, v1\nv_add_u32 v1, s{sLB}, v1")
    A(f"s_and_b32 s{sT0}, s{sWAVE}, 1\ns_lshl_b32 s{sT0}, s{sT0}, 6\nv_xor_b32 v1, s{sT0}, v1")
    A(f"v_lshlrev_b32 v{vHst}, 4, v0")
    A(f"s_lshl_b32 s{sT0}, s{sM}, 1\ns_lshr_b32 s{sT1}, s{sWAVE}, 1\ns_add_u32 s{sT0}, s{sT0}, s{sT1}\ns_mul_i32 s{sHst}, s{sT0}, 229376")
    A(f"s_and_b32 s{sT1}, s{sWAVE}, 1\ns_lshl_b32 s{sT1}, s{sT1}, 10\ns_add_u32 s{sHst}, s{sHst}, s{sT1}")
    A(f"s_lshl_b32 s{sT1}, s{sJ}, 14\ns_add_u32 s{sHst}, s{sHst}, s{sT1}\ns_add_u32 s{sHst}, s{sHst}, {WS_H}")
    A(f"s_lshl_b32 s{sT0}, s{sM}, 7\ns_lshl_b32 s{sT1}, s{sJ}, 2\ns_add_u32 s{sT0}, s{sT0}, s{sT1}\ns_add_u32 s{sT0}, s{sT0}, {WS_F2}")
    A(f"s_cmp_eq_u32 s{sWAVE}, 0\ns_cselect_b32 s{sT0}, s{sT0}, 0x7ffff000")
    A(f"v_mov_b32 v{vFlag}, 0x7ffff000\nv_writelane_b32 v{vFlag}, s{sT0}, 0")
    if opt.rot2: A(f"s_lshl_b32 s{sT0}, s{sN2}, 4\ns_add_u32 s{sT0}, s{sT0}, s{sWAVE}")
    else: A(f"s_mov_b32 s{sT0}, s{sWAVE}")
    A(f"s_mul_i32 s{sDo}, s{sT0}, 14336\ns_lshl_b32 s{sT1}, s{sN2}, 7\ns_add_u32 s{sDo}, s{sDo}, s{sT1}\ns_lshl_b32 s{sHo}, s{sT0}, 11")
    A(f"s_mul_i32 s{sT0}, s{sM2}, 229376\ns_add_u32 s{sT0}, s{sT0}, {WS_H}\ns_add_u32 s{sH}, s36, s{sT0}\ns_addc_u32 s{sH+1}, s37, 0\ns_mov_b32 s{sH+2}, 229376\ns_mov_b32 s{sH+3}, 0x20000")
    A(f"s_mov_b32 s{sK0}, {NLOG2E}\ns_mov_b32 s{sK0+1}, {NLOG2E}")
    A("s_waitcnt lgkmcnt(0)")
    epoch_finish(A)
    A(f"v_mov_b32 v{vEp}, s{sEP}")
    P.stamp("setup")

    def wu(st): return 2 * st + 1 if st < 7 else 7 + st
    ftok = {}
    xtok = {}
    def rd_frag(st, i):
        ks, q = i // 4, i % 4
        mat, ft = q >> 1, q & 1
        slot = wu(st) % 5
        base = vWr + ft + (2 if slot == 4 else 0)
        off = (0 if slot == 4 else slot * 16384) + mat * 8192 + ks * 2048
        b = FB + 4 * (i % 8)
        A.lgop(f"ds_read_b64_tr_b16 v[{b}:{b+1}], v{base} offset:{off}")
        ftok[(st, i)] = A.lgop(f"ds_read_b64_tr_b16 v[{b+2}:{b+3}], v{base} offset:{off+512}")
    def rd_x(c, ks):
        slot = (2 * c) % 5
        r = XF + 16 * c + 4 * ks
        if slot == 4:
            A(f"v_add_u32 v{TMP}, 0x10000, v{vXr+ks}")
            xtok[(c, ks)] = A.lgop(f"ds_read_b128 v[{r}:{r+3}], v{TMP}")
        else:
            xtok[(c, ks)] = A.lgop(f"ds_read_b128 v[{r}:{r+3}], v{vXr+ks} offset:{slot*16384}")
    next_unit = [5]
    pend = []
    def free_units(upto):
        while next_unit[0] <= min(upto + 5, 25):
            pend.extend(issue_unit(next_unit[0])); next_unit[0] += 1
    def drain(n):
        for _ in range(n):
            if pend: pend.pop(0)()
    st_tok = {}
    def barrier(st):
        drain(99)
        need = tok[wu(st)] if st < 14 else None
        if st == 9: need = max(need, st_tok["A"])
        if opt.prof and not opt.lightprof: P.stamp(f"preB{st}")
        A.wait_all(vm=False)
        if need is not None: A.wait(vm=need)
        A("s_barrier")
        if opt.prof and (not opt.lightprof or st in (0, 1, 7, 8, 14)): P.stamp(f"B{st}")
        if st == 9:
            A.vmop(f"buffer_store_dword v{vEp}, v{vFlag}, s[{sWS}:{sWS+3}], 0 offen sc1")
        if st >= 1: free_units(wu(st - 1))

    def epilogue1(hf, mid=None):
        for ft in range(2):
            G, U = ACC + 16 * ft, ACC + 32 + 16 * ft
            for blk in range(2):
                t = TMP; o = TMP + 16 + 4 * blk
                for p in range(4):
                    r = 8 * blk + 2 * p
                    A(f"v_pk_mul_f32 v[{t+2*p}:{t+2*p+1}], v[{G+r}:{G+r+1}], s[{sK0}:{sK0+1}]")
                for p in range(8): A(f"v_exp_f32 v{t+p}, v{t+p}")
                for p in range(4):
                    r = 8 * blk + 2 * p
                    A(f"v_pk_mul_f32 v[{t+8+2*p}:{t+9+2*p}], v[{G+r}:{G+r+1}], v[{U+r}:{U+r+1}]")
                for p in range(4): A(f"v_pk_add_f32 v[{t+2*p}:{t+2*p+1}], v[{t+2*p}:{t+2*p+1}], 1.0 op_sel_hi:[1,0]")
                for p in range(8): A(f"v_rcp_f32 v{t+p}, v{t+p}")
                for p in range(4): A(f"v_pk_mul_f32 v[{t+8+2*p}:{t+9+2*p}], v[{t+8+2*p}:{t+9+2*p}], v[{t+2*p}:{t+2*p+1}]")
                for p in range(4): A(f"v_cvt_pk_bf16_f32 v{o+p}, v{t+8+2*p}, v{t+9+2*p}")
                if blk == 0: A(f"s_add_u32 s{sT2}, s{sHst}, {hf*8192 + ft*4096}")
                st_tok["AB"[hf]] = A.vmop(f"buffer_store_dwordx4 v[{o}:{o+3}], v{vHst}, s[{sWS}:{sWS+3}], s{sT2} offen offset:{blk*2048} sc1")
            if ft == 0 and mid: mid()

    barrier(0)
    for ks in range(4): rd_x(0, ks)
    for i in range(6): rd_frag(0, i)
    for st in range(14):
        c = st % 7
        for i in range(16):
            ks, q = i // 4, i % 4
            need = ftok[(st, i)]
            if st < 7: need = max(need, xtok[(c, ks)])
            A.wait(lg=need)
            b = FB + 4 * (i % 8); x = XF + 16 * c + 4 * ks; a = ACC + 16 * q
            cin = "0" if (c == 0 and ks == 0) else f"v[{a}:{a+15}]"
            A(f"v_mfma_f32_32x32x16_bf16 v[{a}:{a+15}], v[{b}:{b+3}], v[{x}:{x+3}], {cin}")
            if i <= 9: rd_frag(st, i + 6)
            if i == 6 and st < 7: free_units(2 * st)
            if i == 12:
                barrier(st + 1)
                if st < 13:
                    if st + 1 < 7: rd_x(st + 1, 0)
                    rd_frag(st + 1, 0); rd_frag(st + 1, 1)
                else:
                    A(f"s_lshr_b32 s{sT0}, s{sM2}, 1\ns_lshl_b32 s{sT0}, s{sT0}, 7\ns_add_u32 s{sXo}, s{sT0}, {WS_F2}")
                    poll_issue(A, sXo, 14)
            elif i == 13 and st < 13:
                rd_frag(st + 1, 2); rd_frag(st + 1, 3)
                if st + 1 < 7: rd_x(st + 1, 1)
            elif i == 14 and st < 13:
                rd_frag(st + 1, 4)
                if st + 1 < 7: rd_x(st + 1, 2)
            elif i == 15 and st < 13:
                rd_frag(st + 1, 5)
                if st + 1 < 7: rd_x(st + 1, 3)
            if not opt.spread: drain(2 if i != 12 else 0)
            elif (st < 7 and i % 2 == 1) or (st >= 7 and i % 4 == 1) or (st == 6 and i >= 13) or (st == 13 and i >= 13):
                v0 = A.vm
                while pend and A.vm == v0: drain(1)
                if st == 6 and i == 15: drain(99)
        if st == 6: epilogue1(0)
    drain(99)

    HR = XF
    HD = 12
    vHo = 2
    vDr = 4
    AC2 = ACC
    htok = {}
    def issue_h(st):
        r = HR + 8 * (st % HD)
        A.vmop(f"buffer_load_dwordx4 v[{r}:{r+3}], v{vHo}, s[{sH}:{sH+3}], s{sHo} offen sc1")
        htok[st] = A.vmop(f"buffer_load_dwordx4 v[{r+4}:{r+7}], v{vHo+1}, s[{sH}:{sH+3}], s{sHo} offen sc1")
        wrap_add(A, sHo, 16384, 229376)
        if st == 13: A(f"s_add_u32 s{sHo}, s{sHo}, 8192")
    def mid():
        A(f"s_lshr_b32 s{sT0}, s{sWAVE}, 1\ns_lshl_b32 s{sT0}, s{sT0}, 10")
        A(f"v_or_b32 v{vHo}, s{sT0}, v{vHst}\nv_xor_b32 v{vHo+1}, 0x400, v{vHo}")
        A(f"v_mov_b32 v{vDr}, v1\nv_xor_b32 v{vDr+1}, 64, v1\nv_add_u32 v{vDr+2}, 0x10000, v{vDr}\nv_add_u32 v{vDr+3}, 0x10000, v{vDr+1}")
        poll_check(A, sXo, 14, 8)
        P.stamp("flagA")
        for st in range(opt.pdh): issue_h(st)
    epilogue1(1, mid)
    P.stamp("epiB")
    wtok = {}
    def rd_wd(st):
        slot = (21 + st // 2) % 5
        off = (0 if slot == 4 else slot * 16384) + (st & 1) * 2048
        for dt in range(2):
            base = vDr + dt + (2 if slot == 4 else 0)
            b = FB + 8 * (st % 2) + 4 * dt
            A.lgop(f"ds_read_b64_tr_b16 v[{b}:{b+1}], v{base} offset:{off}")
            wtok[(st, dt)] = A.lgop(f"ds_read_b64_tr_b16 v[{b+2}:{b+3}], v{base} offset:{off+512}")
    A.wait(vm=dtok[0])
    rd_wd(0)
    FLAG_STEP = 3
    POLL_STEP = 14 - opt.pdh
    for st in range(28):
        if st == FLAG_STEP:
            A.wait(vm=st_tok["B"])
            A("s_barrier")
            A.vmop(f"buffer_store_dword v{vEp}, v{vFlag}, s[{sWS}:{sWS+3}], 0 offen offset:2048 sc1")
        if st == POLL_STEP:
            A.wait_all(vm=False)
            A(f"s_add_u32 s{sXo}, s{sXo}, 2048")
            poll_issue(A, sXo, 14)
            poll_check(A, sXo, 14, 8)
            P.stamp("flagB")
        if st + opt.pdh < 28: issue_h(st + opt.pdh)
        if st == 24:
            A.wait_all(vm=False)
            A(f"s_lshl_b32 s{sXo}, s{sN2}, 7\ns_add_u32 s{sXo}, s{sXo}, {WS_F3}")
            if not opt.nossm:
                poll_issue(A, sXo, 32)
                poll_check(A, sXo, 32, 8)
            P.stamp("flagY")
            ATS = (21 + 10) % 5
            A(f"v_lshrrev_b32 v{TMP}, 3, v0\nv_lshlrev_b32 v{TMP}, 12, v{TMP}\nv_and_b32 v{TMP+1}, 7, v0\nv_lshl_add_u32 v{TMP}, v{TMP+1}, 4, v{TMP}")
            A(f"v_add_u32 v{TMP+1}, {32768-1024}, v{TMP}")
            A(f"s_lshl_b32 s{sT0}, s{sN2}, 2\ns_add_u32 s{sT0}, s{sT0}, s{sWAVE}\ns_lshl_b32 s{sT0}, s{sT0}, 16\ns_lshl_b32 s{sT1}, s{sM2}, 7\ns_add_u32 s{sT0}, s{sT0}, s{sT1}\ns_add_u32 s{sT2}, s{sT0}, {WS_AT}")
            A(f"s_add_u32 m0, s{sLB}, {ATS*16384}")
            A.vmop(f"buffer_load_dwordx4 v{TMP}, s[{sWS}:{sWS+3}], s{sT2} offen sc1 lds")
            at_tok = A.vmop(f"buffer_load_dwordx4 v{TMP+1}, s[{sWS}:{sWS+3}], s{sT2} offen offset:1024 sc1 lds")
            vG = TMP + 2
            A(f"v_and_b32 v{TMP+4}, 31, v0\nv_lshlrev_b32 v{TMP+4}, 3, v{TMP+4}")
            A(f"s_lshl_b32 s{sT0}, s{sM2}, 1\ns_lshr_b32 s{sT1}, s{sWAVE}, 1\ns_add_u32 s{sT0}, s{sT0}, s{sT1}\ns_lshl_b32 s{sWo}, s{sT0}, 8\ns_add_u32 s{sWo}, s{sWo}, {WS_GATE}")
            g_tok = A.vmop(f"buffer_load_dwordx2 v[{vG}:{vG+1}], v{TMP+4}, s[{sWS}:{sWS+3}], s{sWo} offen sc1")
        need = htok[st]
        if st + 1 < 28: need = max(need, dtok[st + 1])
        A.wait(vm=need)
        if st + 1 < 28: rd_wd(st + 1)
        r = HR + 8 * (st % HD)
        for dt in range(2):
            A.wait(lg=wtok[(st, dt)])
            for tt in range(2):
                a = AC2 + 16 * (dt + 2 * tt); b = FB + 8 * (st % 2) + 4 * dt
                cin = "0" if st == 0 else f"v[{a}:{a+15}]"
                A(f"v_mfma_f32_32x32x16_bf16 v[{a}:{a+15}], v[{b}:{b+3}], v[{r+4*tt}:{r+4*tt+3}], {cin}")
        if st + 10 < 28:
            for f in issue_wd(st + 10): f()
    P.stamp("g2loop")
    RS = [2, 3, 0]
    A(f"v_add_u32 v{TMP+5}, s{sLB}, v{vHst}")
    for a in range(1, 4):
        for k in range(4):
            r = AC2 + 16 * a + 4 * k
            A.lgop(f"ds_write_b128 v{TMP+5}, v[{r}:{r+3}] offset:{RS[a-1]*16384 + k*1024}")
    for a in range(1, 4): A(f"v_xor_b32 v{TMP+5+a}, {a << 12}, v{TMP+5}")
    A(f"v_lshrrev_b32 v{TMP+9}, 5, v0\nv_lshlrev_b32 v{TMP+9}, 12, v{TMP+9}\nv_bfe_u32 v{TMP+10}, v0, 2, 2\nv_lshl_add_u32 v{TMP+9}, v{TMP+10}, 7, v{TMP+9}")
    A(f"v_bfe_u32 v{TMP+10}, v0, 4, 1\nv_lshl_add_u32 v{TMP+9}, v{TMP+10}, 5, v{TMP+9}\nv_and_b32 v{TMP+10}, 3, v0\nv_lshl_add_u32 v{TMP+9}, v{TMP+10}, 3, v{TMP+9}")
    A(f"s_and_b32 s{sT0}, s{sWAVE}, 1\ns_lshl_b32 s{sT0}, s{sT0}, 13\ns_lshr_b32 s{sT1}, s{sWAVE}, 1\ns_lshl_b32 s{sT1}, s{sT1}, 6\ns_add_u32 s{sT0}, s{sT0}, s{sT1}")
    A(f"v_add_u32 v{TMP+9}, s{sT0}, v{TMP+9}")
    A(f"v_and_b32 v{TMP+10}, 31, v0\nv_mul_u32_u24 v{TMP+10}, 896, v{TMP+10}\nv_lshrrev_b32 v{TMP+11}, 5, v0\nv_lshl_add_u32 v{TMP+10}, v{TMP+11}, 5, v{TMP+10}")
    A(f"s_lshl_b32 s{sT0}, s{sM2}, 1\ns_lshr_b32 s{sT1}, s{sWAVE}, 1\ns_add_u32 s{sT0}, s{sT0}, s{sT1}\ns_mul_i32 s{sT2}, s{sT0}, 28672")
    A(f"s_lshl_b32 s{sT0}, s{sN2}, 1\ns_and_b32 s{sT1}, s{sWAVE}, 1\ns_add_u32 s{sT0}, s{sT0}, s{sT1}\ns_lshl_b32 s{sT0}, s{sT0}, 6\ns_add_u32 s{sT2}, s{sT2}, s{sT0}")
    A("s_waitcnt vmcnt(0) lgkmcnt(0)")
    A("s_barrier")
    PR = XF
    rt = []
    for a in range(1, 4):
        for k in range(4):
            r = PR + 16 * (a - 1) + 4 * k
            t = A.lgop(f"ds_read_b128 v[{r}:{r+3}], v{TMP+5+a} offset:{RS[a-1]*16384 + k*1024}")
        rt.append(t)
    vG = TMP + 2
    top, ok = uid("gt"), uid("go")
    A(f"s_mov_b32 s{sSPIN}, 0")
    A.label(top)
    A(f"v_cmp_ne_u32 vcc, s{sEP}, v{vG+1}")
    A(f"s_cbranch_vccz {ok}")
    if opt.nossm: A(f"s_branch {ok}")
    A(f"s_add_u32 s{sSPIN}, s{sSPIN}, 1\ns_cmp_ge_u32 s{sSPIN}, {SPIN_MAX}\ns_cbranch_scc1 {ok}")
    A(f"buffer_load_dwordx2 v[{vG}:{vG+1}], v{TMP+4}, s[{sWS}:{sWS+3}], s{sWo} offen sc1")
    A("s_waitcnt vmcnt(0)")
    A(f"s_branch {top}")
    A.label(ok)
    A.wait(lg=rt[0])
    AT = FB
    ATS = (21 + 10) % 5
    for e in range(4):
        at = A.lgop(f"ds_read_b64_tr_b16 v[{AT+2*e}:{AT+2*e+1}], v{TMP+9} offset:{ATS*16384 + e*512}")
    A(f"v_lshlrev_b32 v{TMP+12}, 16, v{vG}\nv_and_b32 v{TMP+14}, 0xffff0000, v{vG}")
    for a in range(3):
        if a: A.wait(lg=rt[a])
        for p in range(8):
            A(f"v_pk_add_f32 v[{AC2+2*p}:{AC2+2*p+1}], v[{AC2+2*p}:{AC2+2*p+1}], v[{PR+16*a+2*p}:{PR+16*a+2*p+1}]")
    for p in range(8):
        A(f"v_pk_mul_f32 v[{AC2+2*p}:{AC2+2*p+1}], v[{AC2+2*p}:{AC2+2*p+1}], v[{TMP+14}:{TMP+15}] op_sel_hi:[1,0]")
    A.wait(lg=at)
    for p in range(8):
        A(f"v_lshlrev_b32 v{PR+2*p}, 16, v{AT+p}\nv_and_b32 v{PR+2*p+1}, 0xffff0000, v{AT+p}")
    for p in range(8):
        A(f"v_pk_fma_f32 v[{AC2+2*p}:{AC2+2*p+1}], v[{PR+2*p}:{PR+2*p+1}], v[{TMP+12}:{TMP+13}], v[{AC2+2*p}:{AC2+2*p+1}] op_sel_hi:[1,0,1]")
    for p in range(8):
        A(f"v_cvt_pk_bf16_f32 v{AT+8+p}, v{AC2+2*p}, v{AC2+2*p+1}")
    A(f"buffer_store_dwordx4 v[{AT+8}:{AT+11}], v{TMP+10}, s[{sO}:{sO+3}], s{sT2} offen")
    A(f"buffer_store_dwordx4 v[{AT+12}:{AT+15}], v{TMP+10}, s[{sO}:{sO+3}], s{sT2} offen offset:16")
    P.stamp("end")
    P.flush(TMP)
    A("s_endpgm")
    return P.names

def gate_issue(A, vx, vw, vt):
    srd(A, sW, 30, 896)
    A(f"s_and_b32 s{sT0}, s{sM2}, 28\ns_lshl_b32 s{sT0}, s{sT0}, 6\ns_lshl_b32 s{sT1}, s{sSLOT}, 3\ns_add_u32 s{sT0}, s{sT0}, s{sT1}\ns_lshl_b32 s{sT1}, s{sWAVE}, 1\ns_add_u32 s{sXb}, s{sT0}, s{sT1}")
    A(f"s_mul_i32 s{sT2}, s{sXb}, 896")
    A(f"v_lshlrev_b32 v{vt}, 4, v0\nv_cmp_gt_u32 vcc, 56, v0\nv_mov_b32 v{vt+1}, 0x7ffff000\nv_cndmask_b32 v{vt}, v{vt+1}, v{vt}, vcc")
    A.vmop(f"buffer_load_dwordx4 v[{vx}:{vx+3}], v{vt}, s[{sX}:{sX+3}], s{sT2} offen")
    A.vmop(f"buffer_load_dwordx4 v[{vx+4}:{vx+7}], v{vt}, s[{sX}:{sX+3}], s{sT2} offen offset:896")
    return A.vmop(f"buffer_load_dwordx4 v[{vw}:{vw+3}], v{vt}, s[{sW}:{sW+3}], 0 offen")

def gate_compute(A, vx, vw, vt):
    a0, a1 = vt + 4, vt + 5
    A(f"v_mov_b32 v{a0}, 0\nv_mov_b32 v{a1}, 0")
    for k in range(4):
        A(f"v_dot2_f32_bf16 v{a0}, v{vx+k}, v{vw+k}, v{a0}")
        A(f"v_dot2_f32_bf16 v{a1}, v{vx+4+k}, v{vw+k}, v{a1}")
    A("s_nop 2")
    for m in ("row_shr:1 row_mask:0xf bank_mask:0xf bound_ctrl:0", "row_shr:2 row_mask:0xf bank_mask:0xf bound_ctrl:0", "row_shr:4 row_mask:0xf bank_mask:0xf bound_ctrl:0",
              "row_shr:8 row_mask:0xf bank_mask:0xf bound_ctrl:0", "row_bcast:15 row_mask:0xa bank_mask:0xf", "row_bcast:31 row_mask:0xc bank_mask:0xf"):
        A(f"v_add_f32_dpp v{a0}, v{a0}, v{a0} {m}")
        A(f"v_add_f32_dpp v{a1}, v{a1}, v{a1} {m}")
    t = vt + 6
    A(f"v_cvt_pk_bf16_f32 v{t}, v{a0}, v{a1}")
    A(f"v_lshlrev_b32 v{a0}, 16, v{t}\nv_and_b32 v{a1}, 0xffff0000, v{t}")
    A(f"v_mul_f32 v{a0}, {NLOG2E}, v{a0}\nv_mul_f32 v{a1}, {NLOG2E}, v{a1}")
    A(f"v_exp_f32 v{a0}, v{a0}\nv_exp_f32 v{a1}, v{a1}")
    A(f"v_add_f32 v{a0}, 1.0, v{a0}\nv_add_f32 v{a1}, 1.0, v{a1}")
    A(f"v_rcp_f32 v{a0}, v{a0}\nv_rcp_f32 v{a1}, v{a1}")
    A(f"v_cvt_pk_bf16_f32 v{t}, v{a0}, v{a1}")
    A(f"v_lshlrev_b32 v{a0}, 16, v{t}\nv_and_b32 v{a1}, 0xffff0000, v{t}")
    A(f"v_sub_f32 v{t}, 1.0, v{a0}\nv_sub_f32 v{t+1}, 1.0, v{a1}")
    A(f"v_cvt_pk_bf16_f32 v{vt}, v{a0}, v{t}\nv_cvt_pk_bf16_f32 v{vt+2}, v{a1}, v{t+1}")
    A(f"v_mov_b32 v{vt+1}, s{sEP}\nv_mov_b32 v{vt+3}, s{sEP}")
    A(f"s_lshl_b32 s{sT0}, s{sXb}, 3\ns_add_u32 s{sT0}, s{sT0}, {WS_GATE}")
    A(f"v_mov_b32 v{t}, 0x7ffff000\nv_writelane_b32 v{t}, s{sT0}, 63")
    return A.vmop(f"buffer_store_dwordx4 v[{vt}:{vt+3}], v{t}, s[{sWS}:{sWS+3}], 0 offen sc1")

PK = [False]
def cmul(A, d, a, b, t):
    if not PK[0]:
        A(f"v_mul_f32 v{t}, v{a+1}, v{b+1}\nv_mul_f32 v{t+1}, v{a+1}, v{b}")
        A(f"v_fma_f32 v{d+1}, v{a}, v{b+1}, v{t+1}\nv_fma_f32 v{d}, v{a}, v{b}, -v{t}")
        return
    A(f"v_pk_mul_f32 v[{t}:{t+1}], v[{a}:{a+1}], v[{b}:{b+1}] op_sel_hi:[1,0]")
    A(f"v_pk_fma_f32 v[{d}:{d+1}], v[{a}:{a+1}], v[{b}:{b+1}], v[{t}:{t+1}] op_sel:[1,1,0] op_sel_hi:[0,1,1] neg_lo:[1,0,0]")

def ssm_role(A, opt):
    PK[0] = opt.pk
    REG = 17408; PIECE = 69632; PITCH = 272; CP = 4160
    vPROF = 255
    P = Prof(A, opt.prof, vPROF)
    sP, sCH, sHW, sD, sDT, sDS, sRND, sRB = 92, 93, 94, 95, 96, 97, 98, 99
    A.label("L_ssm")
    if opt.nossm: A("s_endpgm")
    if opt.kprio: A(f"s_setprio {opt.kprio}")
    A(f"s_sub_u32 s{sP}, s2, 256\ns_lshr_b32 s{sCH}, s{sWAVE}, 1\ns_and_b32 s{sHW}, s{sWAVE}, 1")
    A(f"s_lshl_b32 s{sD}, s{sP}, 1\ns_add_u32 s{sD}, s{sD}, s{sCH}")
    A(f"s_lshl_b32 s{sT0}, s{sP}, 2")
    A(f"s_load_dword s{sDT}, s[18:19], s{sT0}\ns_load_dword s{sDS}, s[20:21], s{sT0}")
    A("v_lshrrev_b32 v1, 3, v0\nv_mul_u32_u24 v2, 896, v1\nv_and_b32 v3, 7, v0\nv_lshl_add_u32 v2, v3, 4, v2\nv_add_u32 v3, 6144, v2")
    A(f"s_lshl_b32 s{sT0}, s{sM2}, 2\ns_add_u32 s{sT0}, s{sT0}, s{sWAVE}\ns_mul_i32 s{sT2}, s{sT0}, 14336\ns_lshl_b32 s{sT1}, s{sN2}, 7\ns_add_u32 s{sT2}, s{sT2}, s{sT1}")
    A(f"s_lshl_b32 s{sT0}, s{sWAVE}, 11\ns_add_u32 m0, s{sT0}, {PIECE}")
    A.vmop(f"buffer_load_dwordx4 v2, s[{sX}:{sX+3}], s{sT2} offen lds")
    ptok = A.vmop(f"buffer_load_dwordx4 v3, s[{sX}:{sX+3}], s{sT2} offen offset:1024 lds")
    gtok = gate_issue(A, 16, 24, 28)
    RAW = 8
    A(f"s_lshl_b32 s{sT0}, s{sP}, 10\ns_lshl_b32 s{sT1}, s{sWAVE}, 8\ns_add_u32 s{sT0}, s{sT0}, s{sT1}")
    A(f"v_lshlrev_b32 v4, 2, v0\nv_add_u32 v5, s{sT0}, v4")
    for k in range(6):
        rtok = A.vmop(f"global_load_dword v{RAW+k}, v5, s[{6+2*k}:{7+2*k}]")
    A(f"s_mul_i32 s{sRB}, s{sWAVE}, {REG}")
    vWR, vFR = 6, 7
    A(f"v_add_u32 v{vWR}, s{sRB}, v4")
    A(f"v_and_b32 v36, 31, v0\nv_mul_u32_u24 v{vFR}, {PITCH}, v36\nv_lshrrev_b32 v37, 5, v0\nv_lshl_add_u32 v{vFR}, v37, 4, v{vFR}\nv_add_u32 v{vFR}, s{sRB}, v{vFR}")
    A("v_lshrrev_b32 v36, 4, v0\nv_bfe_u32 v37, v0, 2, 2\nv_and_b32 v38, 3, v0")
    A(f"v_lshlrev_b32 v39, 10, v36\nv_lshl_add_u32 v39, v37, 7, v39\nv_lshl_add_u32 v39, v38, 3, v39")
    A(f"s_lshl_b32 s{sT0}, s{sWAVE}, 5\ns_add_u32 s{sT0}, s{sT0}, {PIECE}\nv_add_u32 v39, s{sT0}, v39")
    A("v_and_b32 v40, 15, v0\nv_lshlrev_b32 v40, 12, v40\nv_lshl_add_u32 v40, v36, 4, v40")
    A("s_waitcnt lgkmcnt(0)")
    epoch_finish(A)
    A(f"s_lshl_b32 s{sT0}, s{sCH}, 4\ns_lshr_b32 s{sDT}, s{sDT}, s{sT0}\ns_lshl_b32 s{sDT}, s{sDT}, 16\ns_lshr_b32 s{sDS}, s{sDS}, s{sT0}\ns_lshl_b32 s{sDS}, s{sDS}, 16")
    A(f"v_mov_b32 v41, {LOG2E}\nv_mov_b32 v45, s{sDT}\nv_mul_f32 v42, v45, v41\nv_fma_f32 v43, v45, v41, -v42")
    A("v_fmac_f32 v43, 0x32a57060, v45")
    A("v_exp_f32 v42, v42\nv_mul_f32 v43, 0x3f317218, v43")
    A("v_fma_f32 v42, v42, v43, v42\nv_cvt_pk_bf16_f32 v42, v42, v42\nv_lshlrev_b32 v42, 16, v42")
    A(f"v_readfirstlane_b32 s{sDT}, v42")
    P.stamp("setup")
    A.wait(vm=ptok)
    A("s_barrier")
    for e in range(2):
        A.lgop(f"ds_read_b64_tr_b16 v[{48+4*e}:{49+4*e}], v39 offset:{e*4096}")
        t = A.lgop(f"ds_read_b64_tr_b16 v[{50+4*e}:{51+4*e}], v39 offset:{e*4096+512}")
    A(f"s_lshl_b32 s{sT0}, s{sN2}, 2\ns_add_u32 s{sT0}, s{sT0}, s{sWAVE}\ns_lshl_b32 s{sT0}, s{sT0}, 16\ns_lshl_b32 s{sT1}, s{sM2}, 7\ns_add_u32 s{sT0}, s{sT0}, s{sT1}\ns_add_u32 s{sT2}, s{sT0}, {WS_UT}")
    A.wait(lg=t)
    A.vmop(f"buffer_store_dwordx4 v[48:51], v40, s[{sWS}:{sWS+3}], s{sT2} offen sc1")
    A.vmop(f"buffer_store_dwordx4 v[52:55], v40, s[{sWS}:{sWS+3}], s{sT2} offen offset:64 sc1")
    A.wait(vm=gtok)
    gate_compute(A, 16, 24, 28)
    P.stamp("piece")
    vF1, vF3, vEp = 14, 15, 5
    A(f"s_lshl_b32 s{sT0}, s{sN2}, 7\ns_lshl_b32 s{sT1}, s{sM2}, 2\ns_add_u32 s{sT0}, s{sT0}, s{sT1}\ns_add_u32 s{sT0}, s{sT0}, {WS_F1}")
    A(f"s_lshl_b32 s{sT1}, s{sP}, 2\ns_add_u32 s{sT1}, s{sT1}, {WS_F3}")
    A(f"s_cmp_eq_u32 s{sWAVE}, 0\ns_cselect_b32 s{sT0}, s{sT0}, 0x7ffff000\ns_cselect_b32 s{sT1}, s{sT1}, 0x7ffff000")
    A.wait(vm=rtok)
    A(f"v_mov_b32 v{vF1}, 0x7ffff000\nv_mov_b32 v{vF3}, 0x7ffff000\nv_writelane_b32 v{vF1}, s{sT0}, 0\nv_writelane_b32 v{vF3}, s{sT1}, 0\nv_mov_b32 v{vEp}, s{sEP}")
    KA = 64
    KF = 96
    for r in range(16): A(f"v_mov_b32 v{KA+r}, 0")
    A(f"s_mov_b32 s{sRND}, 0")
    A.label("L_kround")
    U = 16
    for k in range(6): A(f"v_lshlrev_b32 v{U+k}, 16, v{RAW+k}")
    for k in range(6): A(f"v_lshrrev_b32 v{RAW+k}, 16, v{RAW+k}")
    for k in range(4): A(f"v_mul_f32 v{U+k}, s{sDT}, v{U+k}")
    A(f"v_mul_f32 v{U}, {LOG2E}, v{U}\nv_mul_f32 v{U+1}, 0.15915494, v{U+1}")
    E1, E8, E256, W0, T = 22, 24, 26, 28, 30
    cmul(A, W0, U + 4, U + 2, T)
    for (E, sh) in ((E1, 0), (E8, 3), (E256, 8)):
        if sh:
            A(f"v_ldexp_f32 v32, v{U}, {sh}\nv_ldexp_f32 v33, v{U+1}, {sh}\nv_exp_f32 v32, v32\nv_fract_f32 v33, v33")
        else:
            A(f"v_exp_f32 v32, v{U}\nv_fract_f32 v33, v{U+1}")
        A(f"v_cos_f32 v{E}, v33\nv_sin_f32 v{E+1}, v33")
        A(f"v_mul_f32 v{E}, v{E}, v32\nv_mul_f32 v{E+1}, v{E+1}, v32")
    pk = [0]
    def put(reg, rows, neg):
        o = 56 + (pk[0] % 8); pk[0] += 1
        A(f"v_cvt_pk_bf16_f32 v{o}, v{reg}, {'-' if neg else ''}v{reg+1}")
        for r in rows: A(f"ds_write_b32 v{vWR}, v{o} offset:{r*PITCH}")
    prow = {0:[0],1:[1],2:[2],3:[3],4:[4],5:[5],6:[6],7:[7],256:[8,9],258:[10],260:[11,12,13],262:[14],264:[15],
            512:[16],516:[17],520:[18,19],768:[20],772:[21],776:[22,23],1024:[24],1032:[25],1280:[26],1288:[27],1536:[28],1544:[29],1792:[30],1800:[31]}
    qs, ps = [], []
    Q = 34
    qs.append(lambda: (A("v_mov_b32 v55, 0x3f80"), A(f"ds_write_b32 v{vWR}, v55 offset:{32*PITCH}")))
    qs.append(lambda: put(E8, [33], False))
    for j in range(2, 32):
        qs.append(lambda j=j: (cmul(A, Q, E8 if j == 2 else Q, E8, 36), put(Q, [32 + j], False)))
    PC, P2, P4, P6, P8 = 38, 40, 42, 44, 46
    ps.append(lambda: put(W0, prow[0], True))
    src = W0
    for l in range(1, 8):
        dst = {2: P2, 4: P4, 6: P6}.get(l, PC)
        ps.append(lambda l=l, src=src, dst=dst: (cmul(A, dst, src, E1, 48), put(dst, prow[l], True)))
        src = dst
    ps.append(lambda: cmul(A, P8, W0, E8, 48))
    for (reg, base, n) in ((P2, 2, 1), (P6, 6, 1), (P4, 4, 3), (W0, 0, 7), (P8, 8, 7)):
        for k in range(1, n + 1):
            ps.append(lambda reg=reg, l=base + 256 * k: (cmul(A, reg, reg, E256, 48), put(reg, prow[l], True)))
    for i in range(max(len(qs), len(ps))):
        if i < len(qs): qs[i]()
        if i < len(ps): ps[i]()
    A("s_waitcnt lgkmcnt(0)")
    kt = []
    def krd(ks):
        A.lgop(f"ds_read_b128 v[{KF+8*ks}:{KF+8*ks+3}], v{vFR} offset:{ks*32}")
        kt.append(A.lgop(f"ds_read_b128 v[{KF+8*ks+4}:{KF+8*ks+7}], v{vFR} offset:{32*PITCH + ks*32}"))
    for ks in range(6): krd(ks)
    for ks in range(8):
        A.wait(lg=kt[ks])
        A(f"v_mfma_f32_32x32x16_bf16 v[{KA}:{KA+15}], v[{KF+8*ks}:{KF+8*ks+3}], v[{KF+8*ks+4}:{KF+8*ks+7}], v[{KA}:{KA+15}]")
        if ks + 6 < 8: krd(ks + 6)
    A(f"s_cmp_eq_u32 s{sRND}, 1\ns_cbranch_scc1 L_kdone")
    A(f"s_mov_b32 s{sRND}, 1")
    A("s_waitcnt vmcnt(0)\ns_barrier")
    A(f"buffer_store_dword v{vEp}, v{vF1}, s[{sWS}:{sWS+3}], 0 offen sc1")
    A("s_branch L_kround")
    A.label("L_kdone")
    A("s_nop 7")
    P.stamp("kgen")
    sUB, sKB, sXB = sXo, sWo, sDo
    A(f"s_mul_i32 s{sUB}, s{sCH}, {2*REG}\ns_add_u32 s{sXB}, s{sUB}, {REG}\ns_add_u32 s{sKB}, s{sXB}, 4096")
    A(f"v_lshlrev_b32 v4, 4, v0\nv_add_u32 v16, s{sXB}, v4")
    A(f"s_cmp_eq_u32 s{sHW}, 0\ns_cbranch_scc1 L_even1")
    for k in range(4): A(f"ds_write_b128 v16, v[{KA+4*k}:{KA+4*k+3}] offset:{k*1024}")
    A(f"s_lshr_b32 s{sT0}, s{sP}, 5\ns_lshl_b32 s{sHo}, s{sT0}, 7\ns_add_u32 s{sHo}, s{sHo}, {WS_F1}")
    A("s_waitcnt lgkmcnt(0)")
    A("s_barrier")
    poll_issue(A, sHo, 32)
    poll_check(A, sHo, 32, 17)
    P.stamp("flagU")
    A(f"s_lshl_b32 s{sT2}, s{sD}, 12\ns_add_u32 s{sT2}, s{sT2}, {WS_UT}")
    for k in range(4): A(f"buffer_load_dwordx4 v[{20+4*k}:{23+4*k}], v4, s[{sWS}:{sWS+3}], s{sT2} offen offset:{k*1024} sc1")
    A(f"v_lshrrev_b32 v17, 4, v0\nv_mul_u32_u24 v17, {CP}, v17\nv_and_b32 v18, 15, v0\nv_lshl_add_u32 v17, v18, 2, v17\nv_add_u32 v17, s{sUB}, v17\nv_mov_b32 v18, 0")
    A("ds_write_b32 v17, v18")
    A(f"v_add_u32 v17, s{sUB}, v4")
    A("s_waitcnt vmcnt(0)")
    for k in range(4): A(f"ds_write_b128 v17, v[{20+4*k}:{23+4*k}] offset:{32 + k*1024}")
    for k in range(4): A(f"ds_read_b32 v{36+k}, v17 offset:{28 + k*1024}")
    for k in range(4): A(f"v_add_u32 v{56+k}, {2*CP + 36 + k*1024}, v17\nv_add_u32 v{60+k}, {3*CP + 36 + k*1024}, v17")
    for k in range(4):
        A(f"ds_write2_b32 v{56+k}, v{20+4*k}, v{21+4*k} offset0:0 offset1:1")
        A(f"ds_write2_b32 v{56+k}, v{22+4*k}, v{23+4*k} offset0:2 offset1:3")
    A("s_waitcnt lgkmcnt(8)")
    for k in range(4):
        A(f"v_alignbit_b32 v{40+4*k}, v{20+4*k}, v{36+k}, 16")
        for i in range(1, 4): A(f"v_alignbit_b32 v{40+4*k+i}, v{20+4*k+i}, v{20+4*k+i-1}, 16")
    for k in range(4):
        A(f"ds_write_b128 v17, v[{40+4*k}:{43+4*k}] offset:{CP + 32 + k*1024}")
        A(f"ds_write2_b32 v{60+k}, v{40+4*k}, v{41+4*k} offset0:0 offset1:1")
        A(f"ds_write2_b32 v{60+k}, v{42+4*k}, v{43+4*k} offset0:2 offset1:3")
    A("s_branch L_join1")
    A.label("L_even1")
    A("s_barrier")
    for k in range(4): A(f"ds_read_b128 v[{20+4*k}:{23+4*k}], v16 offset:{k*1024}")
    A(f"v_lshlrev_b32 v17, 3, v0\nv_add_u32 v17, s{sKB}, v17\nv_mov_b32 v18, 0\nv_mov_b32 v19, 0\nds_write_b64 v17, v[18:19]")
    A(f"v_and_b32 v36, 31, v0\nv_lshlrev_b32 v36, 4, v36\nv_add_u32 v36, s{sKB}, v36\nv_lshrrev_b32 v37, 5, v0")
    A("v_lshl_add_u32 v38, v37, 3, v36\nv_lshl_add_u32 v39, v37, 9, v36\nv_lshl_add_u32 v40, v37, 10, v36")
    A("v_and_b32 v41, 1, v0\nv_cmp_eq_u32 vcc, 1, v41")
    A("s_waitcnt lgkmcnt(1)")
    for p in range(8): A(f"v_pk_add_f32 v[{KA+2*p}:{KA+2*p+1}], v[{KA+2*p}:{KA+2*p+1}], v[{20+2*p}:{21+2*p}]")
    r = lambda i: f"v{KA+i}"
    A(f"v_cvt_pk_bf16_f32 v20, {r(0)}, {r(1)}\nv_cvt_pk_bf16_f32 v21, {r(2)}, {r(3)}\nv_cvt_pk_bf16_f32 v22, {r(4)}, {r(5)}\nv_cvt_pk_bf16_f32 v23, {r(6)}, {r(7)}")
    A("ds_write_b64 v38, v[20:21] offset:512\nds_write_b64 v38, v[22:23] offset:1024")
    A(f"v_cvt_pk_bf16_f32 v24, {r(8)}, {r(8)}\nv_cvt_pk_bf16_f32 v25, {r(8)}, {r(9)}\nv_cvt_pk_bf16_f32 v26, {r(9)}, {r(9)}\nv_cvt_pk_bf16_f32 v27, {r(10)}, {r(10)}")
    A("ds_write_b128 v39, v[24:27] offset:1536")
    for e in range(2):
        a0, a8, o = 12 + 2 * e, 13 + 2 * e, 28 + 4 * e
        A(f"v_cndmask_b32 v41, {r(a0)}, {r(a8)}, vcc")
        A(f"v_cvt_pk_bf16_f32 v{o}, {r(a0)}, {r(a0)}\nv_cvt_pk_bf16_f32 v{o+1}, {r(a0)}, {r(a0)}\nv_cvt_pk_bf16_f32 v{o+2}, v41, {r(a8)}\nv_cvt_pk_bf16_f32 v{o+3}, {r(a8)}, {r(a8)}")
        A(f"ds_write_b128 v40, v[{o}:{o+3}] offset:{2560 + 512*e}")
    if opt.prof: P.n -= 1; P.names.pop(); P.stamp("flagU")
    A.label("L_join1")
    vU, vK = 6, 7
    A("v_lshrrev_b32 v16, 5, v0\nv_bfe_u32 v17, v0, 4, 1\nv_bfe_u32 v18, v0, 2, 2\nv_and_b32 v19, 3, v0")
    A(f"v_mul_u32_u24 v{vU}, {CP}, v18\nv_lshl_add_u32 v{vU}, v16, 5, v{vU}\nv_lshl_add_u32 v{vU}, v19, 3, v{vU}\nv_lshlrev_b32 v8, 4, v17\nv_sub_u32 v{vU}, v{vU}, v8")
    A(f"s_lshl_b32 s{sT0}, s{sHW}, 8\ns_add_u32 s{sT1}, s{sUB}, s{sT0}\ns_add_u32 s{sT1}, s{sT1}, 24\nv_add_u32 v{vU}, s{sT1}, v{vU}")
    A(f"v_and_b32 v9, 15, v0\nv_sub_u32 v9, v9, v16\nv_lshlrev_b32 v9, 5, v9\nv_add_u32 v{vK}, v9, v8")
    A(f"s_sub_u32 s{sT1}, s{sKB}, s{sT0}\ns_add_u32 s{sT1}, s{sT1}, {512-192}\nv_add_u32 v{vK}, s{sT1}, v{vK}")
    A("s_waitcnt lgkmcnt(0)\ns_barrier")
    P.stamp("prep")
    if opt.cprio != opt.kprio: A(f"s_setprio {opt.cprio}")
    CA = 16; SET = [64, 128]
    def loads(rho):
        b = SET[rho & 1]; L = []
        for i in range(8):
            L.append(f"ds_read_b64_tr_b16 v[{b+4*i}:{b+4*i+1}], v{vU} offset:{64*rho + 512*i + 8}")
            L.append(f"ds_read_b64_tr_b16 v[{b+4*i+2}:{b+4*i+3}], v{vU} offset:{64*rho + 512*i}")
            L.append(f"ds_read_b128 v[{b+32+4*i}:{b+32+4*i+3}], v{vK} offset:{192 - 64*rho + 512*i}")
        return L
    for x in loads(0): A(x)
    first = set()
    for rho in range(4):
        A("s_waitcnt lgkmcnt(0)")
        b = SET[rho & 1]
        nxt = loads(rho + 1) if rho < 3 else []
        pairs = [(be, de) for be in range(8) for de in range(8 - be)]
        for (be, de) in pairs:
            a = CA + 4 * (be + de)
            cin = f"v[{a}:{a+3}]" if (be + de) in first else "0"
            first.add(be + de)
            A(f"v_mfma_f32_16x16x32_bf16 v[{a}:{a+3}], v[{b+4*be}:{b+4*be+3}], v[{b+32+4*de}:{b+32+4*de+3}], {cin}")
            if nxt: A(nxt.pop(0))
    P.stamp("conv")
    A(f"v_lshlrev_b32 v4, 4, v0\nv_add_u32 v8, s{sXB}, v4")
    A("v_and_b32 v9, 15, v0\nv_lshlrev_b32 v9, 5, v9\nv_lshrrev_b32 v10, 4, v0\nv_lshl_add_u32 v9, v10, 3, v9")
    A(f"s_lshl_b32 s{sT0}, s{sHW}, 11\ns_add_u32 s{sT1}, s{sUB}, s{sT0}\nv_add_u32 v10, s{sT1}, v9")
    A(f"s_lshl_b32 s{sT2}, s{sD}, 12\ns_add_u32 s{sT2}, s{sT2}, s{sT0}\ns_add_u32 s{sT2}, s{sT2}, {WS_AT}")
    for k in range(4): A(f"ds_read_b64 v[{80+2*k}:{81+2*k}], v10 offset:{32 + 512*k}")
    A(f"s_cmp_eq_u32 s{sHW}, 0\ns_cbranch_scc1 L_even2")
    for k in range(4): A(f"ds_write_b128 v8, v[{CA+4*k}:{CA+4*k+3}] offset:{12800 + k*1024}")
    A("s_waitcnt lgkmcnt(0)\ns_barrier")
    for k in range(4): A(f"ds_read_b128 v[{64+4*k}:{67+4*k}], v8 offset:{8704 + k*1024}")
    for k in range(16): A(f"v_mov_b32 v{CA+k}, v{CA+16+k}")
    A("s_branch L_join2")
    A.label("L_even2")
    for k in range(4): A(f"ds_write_b128 v8, v[{CA+16+4*k}:{CA+16+4*k+3}] offset:{8704 + k*1024}")
    A("s_waitcnt lgkmcnt(0)\ns_barrier")
    for k in range(4): A(f"ds_read_b128 v[{64+4*k}:{67+4*k}], v8 offset:{12800 + k*1024}")
    A.label("L_join2")
    for k in range(8): A(f"v_lshlrev_b32 v{96+2*k}, 16, v{80+k}\nv_and_b32 v{97+2*k}, 0xffff0000, v{80+k}")
    for k in range(16): A(f"v_fmac_f32 v{CA+k}, s{sDS}, v{96+k}")
    A("s_waitcnt lgkmcnt(0)")
    for p in range(8): A(f"v_pk_add_f32 v[{CA+2*p}:{CA+2*p+1}], v[{CA+2*p}:{CA+2*p+1}], v[{64+2*p}:{65+2*p}]")
    for p in range(8): A(f"v_cvt_pk_bf16_f32 v{80+p}, v{CA+2*p}, v{CA+2*p+1}")
    for k in range(4): A(f"buffer_store_dwordx2 v[{80+2*k}:{81+2*k}], v9, s[{sWS}:{sWS+3}], s{sT2} offen offset:{512*k} sc1")
    A("s_waitcnt vmcnt(0)\ns_barrier")
    A(f"buffer_store_dword v{vEp}, v{vF3}, s[{sWS}:{sWS+3}], 0 offen sc1")
    P.stamp("end")
    P.flush(4)
    A("s_endpgm")
    return P.names

def aux_role(A, opt):
    A.label("L_aux")
    gtok = gate_issue(A, 16, 24, 28)
    A("s_waitcnt lgkmcnt(0)")
    epoch_finish(A)
    A.wait(vm=gtok)
    gate_compute(A, 16, 24, 28)
    A(f"s_cmp_lg_u32 s2, 224\ns_cbranch_scc1 L_end\ns_cmp_lg_u32 s{sWAVE}, 0\ns_cbranch_scc1 L_end")
    A(f"s_mov_b32 s{sSPIN}, 0")
    A("v_and_b32 v1, 15, v0\nv_min_u32 v1, 13, v1\nv_lshrrev_b32 v2, 4, v0\nv_lshlrev_b32 v2, 7, v2\nv_lshl_add_u32 v1, v1, 2, v2")
    A("v_lshlrev_b32 v2, 4, v0\nv_add_u32 v2, 4, v2")
    A.label("L_upd")
    A(f"s_mov_b32 s{sT0}, {WS_F2}")
    for k in range(4): A(f"buffer_load_dword v{40+k}, v1, s[{sWS}:{sWS+3}], s{sT0} offen offset:{512*k} sc1")
    for k in range(16):
        if k % 4 == 0: A(f"s_mov_b32 s{sT0}, {WS_GATE + 1024*k}")
        A(f"buffer_load_dword v{44+k}, v2, s[{sWS}:{sWS+3}], s{sT0} offen offset:{1024*(k%4)} sc1")
    A("s_waitcnt vmcnt(0)")
    A("v_mov_b32 v3, 0")
    for k in range(4 if opt.nossm else 20): A(f"v_xor_b32 v4, s{sEP}, v{40+k}\nv_or_b32 v3, v3, v4")
    A("v_cmp_ne_u32 vcc, 0, v3")
    A("s_cbranch_vccz L_upd_ok")
    A(f"s_add_u32 s{sSPIN}, s{sSPIN}, 1\ns_cmp_ge_u32 s{sSPIN}, {SPIN_MAX}\ns_cbranch_scc1 L_upd_ok")
    A("s_sleep 8\ns_branch L_upd")
    A.label("L_upd_ok")
    A(f"v_mov_b32 v3, 0x7ffff000\nv_writelane_b32 v3, 0, 0\nv_mov_b32 v4, s{sEP}")
    A(f"buffer_store_dword v4, v3, s[{sWS}:{sWS+3}], 0 offen sc1")
    A("s_endpgm")

def build(opt):
    A = Asm()
    A(f"s_cmp_ge_u32 s2, {NWG}\ns_cbranch_scc1 L_end")
    A("s_load_dwordx16 s[4:19], s[0:1], 0\ns_load_dwordx16 s[20:35], s[0:1], 64\ns_load_dwordx2 s[36:37], s[0:1], 128")
    A(f"v_lshrrev_b32 v1, 6, v0\nv_and_b32 v0, 63, v0\nv_readfirstlane_b32 s{sWAVE}, v1")
    A(f"s_and_b32 s{sXC}, s2, 7\ns_bfe_u32 s{sSLOT}, s2, 0x50003")
    A(f"s_and_b32 s{sT0}, s{sXC}, 3\ns_lshl_b32 s{sT0}, s{sT0}, 3\ns_lshr_b32 s{sT1}, s{sXC}, 2\ns_lshl_b32 s{sT1}, s{sT1}, 2\ns_add_u32 s{sT0}, s{sT0}, s{sT1}")
    A(f"s_and_b32 s{sT1}, s{sSLOT}, 3\ns_add_u32 s{sM2}, s{sT0}, s{sT1}\ns_lshr_b32 s{sN2}, s{sSLOT}, 2")
    A("s_waitcnt lgkmcnt(0)")
    A(f"s_load_dword s{sEP}, s[36:37], 0")
    srd(A, sX, 4, 1835008)
    srd(A, sWS, 36, WS_SPAN)
    A("s_cmp_ge_u32 s2, 256\ns_cbranch_scc1 L_ssm\ns_cmp_ge_u32 s2, 224\ns_cbranch_scc1 L_aux")
    names = {}
    names["gemm"] = gemm_role(A, opt)
    names["ssm"] = ssm_role(A, opt)
    aux_role(A, opt)
    A.label("L_end")
    A("s_endpgm")
    body, nn = hazard_pass(A.lines)
    ref = open(f"cdna_kernels/{NAME}.s.ref").read().split("\n")
    head = [l for l in ref if l.startswith(";") and "@launch" not in l]
    out = head + [f"; @launch grid=({NWG},1,1) block=(256,1,1) lds=81920",
                  '.amdgcn_target "amdgcn-amd-amdhsa--gfx950"', ".text", f".globl {NAME}_kernel", ".p2align 8",
                  f".type {NAME}_kernel,@function", f"{NAME}_kernel:"]
    out += [("    " + l if not l.endswith(":") else l) for l in body]
    out += ['.section .rodata,"a"', ".p2align 6", f".amdhsa_kernel {NAME}_kernel",
            "  .amdhsa_next_free_vgpr 256", "  .amdhsa_next_free_sgpr 102", "  .amdhsa_accum_offset 256",
            "  .amdhsa_group_segment_fixed_size 0", "  .amdhsa_kernarg_size 136", "  .amdhsa_user_sgpr_count 2",
            "  .amdhsa_user_sgpr_kernarg_segment_ptr 1", "  .amdhsa_system_sgpr_workgroup_id_x 1", ".end_amdhsa_kernel"]
    return "\n".join(out) + "\n", names, nn

if __name__ == "__main__":
    opt = Opt()
    path = sys.argv[1] if len(sys.argv) > 1 else f"cdna_kernels/{NAME}.s"
    for kv in sys.argv[2:]:
        k, val = kv.split("=")
        setattr(opt, k, int(val))
    txt, names, nn = build(opt)
    open(path, "w").write(txt)
    import json
    open(path + ".names.json", "w").write(json.dumps(names))
    print("wrote", path, "lines", txt.count("\n"), "nops inserted", nn)
```

```python
import sys
from asmlib import *

NAME = "gated_mix__ssm_conv_s4__swiglu_ffn__prompt"
WS_F1, WS_F2, WS_F3, WS_GATE = 0x1000, 0x2000, 0x4000, 0x8000
WS_PROF = 0x40000
WS_UT, WS_AT, WS_H = 0x100000, 0x300000, 0x500000
WS_SPAN = 0x1000000
NWG = 480
SPIN_MAX = 20000
LOG2E = 0x3fb8aa3b
NLOG2E = 0xbfb8aa3b

class Opt:
    prof = False
    rot1 = True
    rot2 = True
    pdh = 4
    nossm = False
    pk = False
    lightprof = False
    kprio = 0
    cprio = 0
    gprio = 0
    spread = 1
    echo = ''

sX, sW, sWd, sWS, sO, sH = 40, 44, 48, 52, 56, 68
sWAVE, sM, sJ, sEP, sM2, sN2, sXC, sSLOT = 60, 61, 62, 63, 64, 65, 66, 67
sT0, sT1, sT2, sT3 = 72, 73, 74, 75
sK0 = 76
sXo, sWo, sDo, sHo, sLB = 78, 79, 80, 81, 82
sXb, sWb, sHst = 83, 84, 85
sSPIN = 86
sEP2 = 88
sPROF = 4

def srd(A, d, lo, size):
    A(f"s_mov_b32 s{d}, s{lo}\ns_mov_b32 s{d+1}, s{lo+1}\ns_mov_b32 s{d+2}, {size}\ns_mov_b32 s{d+3}, 0x20000")

class Prof:
    def __init__(self, A, on, vreg, echo=''):
        self.A, self.on, self.vreg, self.n, self.pending = A, on, vreg, 0, False
        self.names = []; self.echo = echo
    def stamp(self, name):
        if self.echo and name == self.echo:
            self.A("s_memrealtime s[90:91]\ns_waitcnt lgkmcnt(0)\ns_sub_u32 s39, s90, s38")
        if self.echo and name == "end":
            self.A("s_memrealtime s[90:91]\ns_waitcnt lgkmcnt(0)\ns_mov_b32 s38, s90\ns_min_u32 s39, s39, 20000")
            self.A.label("L_echo")
            self.A("s_memrealtime s[90:91]\ns_waitcnt lgkmcnt(0)\ns_sub_u32 s90, s90, s38\ns_cmp_lt_u32 s90, s39\ns_cbranch_scc1 L_echo")
        if not self.on: return
        A = self.A
        if name == "setup":
            A(f"v_writelane_b32 v{self.vreg}, s38, 0")
            self.names.append("start"); self.n += 1
        A("s_memrealtime s[90:91]")
        if name in ("setup", "end"): A("s_memtime s[100:101]")
        A("s_waitcnt lgkmcnt(0)")
        if name in ("setup", "end"): A(f"v_writelane_b32 v{self.vreg}, s100, {62 if name == 'setup' else 63}")
        A(f"v_writelane_b32 v{self.vreg}, s90, {self.n}")
        self.names.append(name); self.n += 1
    def flush(self, tmp):
        if not self.on: return
        A = self.A
        A(f"s_lshl_b32 s90, s2, 2\ns_add_u32 s90, s90, s{sWAVE}\ns_lshl_b32 s90, s90, 8\ns_add_u32 s90, s90, {WS_PROF}")
        A(f"v_mbcnt_lo_u32_b32 v{tmp}, -1, 0\nv_mbcnt_hi_u32_b32 v{tmp}, -1, v{tmp}\nv_lshlrev_b32 v{tmp}, 2, v{tmp}")
        A(f"buffer_store_dword v{self.vreg}, v{tmp}, s[{sWS}:{sWS+3}], s90 offen")

def epoch_finish(A):
    A(f"s_mul_i32 s{sEP}, s{sEP}, 0x9E3779B1\ns_add_u32 s{sEP}, s{sEP}, 0x7F4A7C15")
    A(f"s_mov_b32 s{sEP2}, s{sEP}\ns_mov_b32 s{sEP2+1}, s{sEP}")

_uid = [0]
def uid(p):
    _uid[0] += 1; return f"L_{p}{_uid[0]}"

def poll_issue(A, soff, n):
    A(f"s_load_dwordx16 s[4:19], s[36:37], s{soff}")
    if n > 16:
        A(f"s_add_u32 s{sT3}, s{soff}, 64")
        A(f"s_load_dwordx16 s[20:35], s[36:37], s{sT3}")

def poll_check(A, soff, n, vt):
    top, bad, ok = uid("pt"), uid("pb"), uid("po")
    A("s_waitcnt lgkmcnt(0)")
    for i in range(0, n, 2):
        A(f"s_cmp_eq_u64 s[{4+i}:{5+i}], s[{sEP2}:{sEP2+1}]")
        A(f"s_cbranch_scc0 {bad}")
    A(f"s_branch {ok}")
    A.label(bad)
    A(f"s_mov_b32 s{sSPIN}, 0")
    A(f"v_min_u32 v{vt}, {n-1}, v0\nv_lshlrev_b32 v{vt}, 2, v{vt}")
    A.label(top)
    A(f"buffer_load_dword v{vt+1}, v{vt}, s[{sWS}:{sWS+3}], s{soff} offen sc1")
    A("s_waitcnt vmcnt(0)")
    A(f"v_cmp_ne_u32 vcc, s{sEP}, v{vt+1}")
    A(f"s_cbranch_vccz {ok}")
    A(f"s_add_u32 s{sSPIN}, s{sSPIN}, 1\ns_cmp_ge_u32 s{sSPIN}, {SPIN_MAX}\ns_cbranch_scc1 {ok}")
    A("s_sleep 2")
    A(f"s_branch {top}")
    A.label(ok)

def wrap_add(A, reg, step, limit):
    A(f"s_add_u32 s{sT0}, s{reg}, {step}\ns_sub_u32 s{sT1}, s{sT0}, {limit}\ns_cselect_b32 s{reg}, s{sT0}, s{sT1}")

def gemm_role(A, opt):
    vWo, vXo, vXr = 2, 6, 10
    vWr = 224
    vHst, vFlag, vEp = 14, 15, 228
    vPROF = 229
    FB, ACC, XF = 16, 48, 112
    TMP = 232
    P = Prof(A, opt.prof, vPROF, opt.echo)
    A.label("L_gemm")
    if opt.gprio: A(f"s_setprio {opt.gprio}")
    A(f"s_and_b32 s{sT0}, s{sXC}, 3\ns_lshl_b32 s{sT0}, s{sT0}, 2\ns_and_b32 s{sT1}, s{sSLOT}, 3\ns_add_u32 s{sM}, s{sT0}, s{sT1}")
    A(f"s_lshr_b32 s{sT0}, s{sXC}, 2\ns_mul_i32 s{sT0}, s{sT0}, 7\ns_add_u32 s{sJ}, s{sT0}, s{sN2}")
    A(f"s_cmp_lt_u32 s{sWAVE}, 2\ns_cselect_b32 s{sW}, s24, s26\ns_cselect_b32 s{sW+1}, s25, s27\ns_mov_b32 s{sW+2}, 1605632\ns_mov_b32 s{sW+3}, 0x20000")
    srd(A, sWd, 28, 1605632)
    srd(A, sO, 32, 1835008)
    if opt.rot1:
        A(f"s_and_b32 s{sT0}, s{sSLOT}, 3\ns_lshl_b32 s{sT0}, s{sT0}, 1\ns_add_u32 s{sT0}, s{sT0}, s{sN2}")
        A(f"s_sub_u32 s{sT1}, s{sT0}, 7\ns_cselect_b32 s{sT2}, s{sT0}, s{sT1}")
    else:
        A(f"s_mov_b32 s{sT2}, 0")
    A(f"s_lshl_b32 s{sXo}, s{sT2}, 7\ns_mul_i32 s{sWo}, s{sT2}, 229376")
    A(f"s_lshl_b32 s{sT0}, s{sM}, 2\ns_add_u32 s{sT0}, s{sT0}, s{sWAVE}\ns_mul_i32 s{sXb}, s{sT0}, 28672")
    A(f"s_and_b32 s{sT1}, s{sWAVE}, 1\ns_mul_i32 s{sT1}, s{sT1}, 114688\ns_lshl_b32 s{sWb}, s{sJ}, 8\ns_add_u32 s{sWb}, s{sWb}, s{sT1}")
    A(f"s_lshl_b32 s{sLB}, s{sWAVE}, 12")
    A("v_lshrrev_b32 v1, 3, v0")
    A("v_and_b32 v232, 7, v0")
    A("v_lshrrev_b32 v233, 1, v1")
    A("v_and_b32 v234, 1, v233\nv_lshlrev_b32 v234, 2, v234\nv_xor_b32 v234, v234, v232\nv_lshlrev_b32 v234, 4, v234")
    A(f"v_mul_u32_u24 v{vWo}, 3584, v1\nv_add_u32 v{vWo}, v{vWo}, v234")
    for q in range(1, 4): A(f"v_add_u32 v{vWo+q}, {q*27648}, v{vWo}")
    A(f"v_xor_b32 v235, v233, v232\nv_lshlrev_b32 v235, 4, v235")
    A(f"v_mul_u32_u24 v236, 896, v1")
    A(f"v_add_u32 v{vXo}, v236, v235\nv_xor_b32 v235, 64, v235\nv_add_u32 v237, v236, v235")
    A(f"v_add_u32 v{vXo+1}, 6144, v237\nv_add_u32 v{vXo+2}, 12288, v{vXo}\nv_add_u32 v{vXo+3}, 18432, v237")
    vDo = 230
    A(f"v_add_u32 v{vDo}, v236, v234\nv_add_u32 v{vDo+1}, 6144, v{vDo}")

    units = []
    for c in range(7): units += [("X", c), ("W", c)]
    for c in range(7): units += [("V", c)]
    tok = {}
    def issue_unit(u):
        slot = u % 5
        fns = []
        if u < 21:
            kind, c = units[u]
            def pre():
                A(f"s_add_u32 m0, s{sLB}, {slot*16384}")
                if kind == "X":
                    A(f"s_add_u32 s{sT2}, s{sXb}, s{sXo}")
                    wrap_add(A, sXo, 128, 896)
                else:
                    A(f"s_add_u32 s{sT2}, s{sWb}, s{sWo}")
                    wrap_add(A, sWo, 229376, 1605632)
                    if u == 13: A(f"s_add_u32 s{sWb}, s{sWb}, 128")
            fns.append(pre)
            for q in range(4):
                def f(q=q):
                    if kind == "X": t = A.vmop(f"buffer_load_dwordx4 v{vXo+q}, s[{sX}:{sX+3}], s{sT2} offen offset:{q*1024} lds")
                    else: t = A.vmop(f"buffer_load_dwordx4 v{vWo+q}, s[{sW}:{sW+3}], s{sT2} offen offset:{q*1024} lds")
                    tok[u] = t
                fns.append(f)
        else:
            for st in (2 * (u - 21), 2 * (u - 21) + 1):
                fns += issue_wd(st)
        return fns
    dtok = {}
    def issue_wd(st):
        slot = (21 + st // 2) % 5
        def pre():
            A(f"s_add_u32 m0, s{sLB}, {slot*16384 + (st & 1)*2048}")
            A(f"s_mov_b32 s{sT2}, s{sDo}")
            wrap_add(A, sDo, 114688, 1605632)
            if st == 13: A(f"s_add_u32 s{sDo}, s{sDo}, {4*14336}")
        def f(img):
            dtok[st] = A.vmop(f"buffer_load_dwordx4 v{vDo+img}, s[{sWd}:{sWd+3}], s{sT2} offen offset:{img*1024} lds")
        return [pre, lambda: f(0), lambda: f(1)]

    for u in range(5):
        for f in issue_unit(u): f()
    A("v_and_b32 v232, 31, v0\nv_lshrrev_b32 v233, 5, v0")
    A("v_bfe_u32 v234, v0, 1, 3\nv_xor_b32 v234, v234, v233\nv_lshlrev_b32 v234, 4, v234")
    A(f"v_lshl_add_u32 v{vXr}, v232, 7, v234\nv_add_u32 v{vXr}, s{sLB}, v{vXr}")
    for ks in range(1, 4): A(f"v_xor_b32 v{vXr+ks}, {ks*32}, v{vXr}")
    A("v_bfe_u32 v234, v0, 2, 2")
    A("v_lshlrev_b32 v235, 10, v233\nv_lshl_add_u32 v235, v234, 7, v235")
    A("v_bfe_u32 v236, v0, 3, 1\nv_lshl_add_u32 v235, v236, 6, v235")
    A("v_bfe_u32 v236, v0, 4, 1\nv_and_b32 v237, 1, v0\nv_bfe_u32 v238, v0, 1, 1")
    A(f"v_lshl_add_u32 v239, v238, 3, v235")
    A(f"v_lshl_add_u32 v{vWr}, v236, 5, v239\nv_lshl_add_u32 v{vWr}, v237, 4, v{vWr}")
    A(f"v_xor_b32 v{vWr+1}, 64, v{vWr}\nv_add_u32 v{vWr+2}, 0x10000, v{vWr}\nv_add_u32 v{vWr+3}, 0x10000, v{vWr+1}")
    A(f"v_lshl_add_u32 v1, v237, 5, v239\nv_lshl_add_u32 v1, v236, 4, v1\nv_add_u32 v1, s{sLB}, v1")
    A(f"s_and_b32 s{sT0}, s{sWAVE}, 1\ns_lshl_b32 s{sT0}, s{sT0}, 6\nv_xor_b32 v1, s{sT0}, v1")
    A(f"v_lshlrev_b32 v{vHst}, 4, v0")
    A(f"s_lshl_b32 s{sT0}, s{sM}, 1\ns_lshr_b32 s{sT1}, s{sWAVE}, 1\ns_add_u32 s{sT0}, s{sT0}, s{sT1}\ns_mul_i32 s{sHst}, s{sT0}, 229376")
    A(f"s_and_b32 s{sT1}, s{sWAVE}, 1\ns_lshl_b32 s{sT1}, s{sT1}, 10\ns_add_u32 s{sHst}, s{sHst}, s{sT1}")
    A(f"s_lshl_b32 s{sT1}, s{sJ}, 14\ns_add_u32 s{sHst}, s{sHst}, s{sT1}\ns_add_u32 s{sHst}, s{sHst}, {WS_H}")
    A(f"s_lshl_b32 s{sT0}, s{sM}, 7\ns_lshl_b32 s{sT1}, s{sJ}, 2\ns_add_u32 s{sT0}, s{sT0}, s{sT1}\ns_add_u32 s{sT0}, s{sT0}, {WS_F2}")
    A(f"s_cmp_eq_u32 s{sWAVE}, 0\ns_cselect_b32 s{sT0}, s{sT0}, 0x7ffff000")
    A(f"v_mov_b32 v{vFlag}, 0x7ffff000\nv_writelane_b32 v{vFlag}, s{sT0}, 0")
    if opt.rot2: A(f"s_lshl_b32 s{sT0}, s{sN2}, 4\ns_add_u32 s{sT0}, s{sT0}, s{sWAVE}")
    else: A(f"s_mov_b32 s{sT0}, s{sWAVE}")
    A(f"s_mul_i32 s{sDo}, s{sT0}, 14336\ns_lshl_b32 s{sT1}, s{sN2}, 7\ns_add_u32 s{sDo}, s{sDo}, s{sT1}\ns_lshl_b32 s{sHo}, s{sT0}, 11")
    A(f"s_mul_i32 s{sT0}, s{sM2}, 229376\ns_add_u32 s{sT0}, s{sT0}, {WS_H}\ns_add_u32 s{sH}, s36, s{sT0}\ns_addc_u32 s{sH+1}, s37, 0\ns_mov_b32 s{sH+2}, 229376\ns_mov_b32 s{sH+3}, 0x20000")
    A(f"s_mov_b32 s{sK0}, {NLOG2E}\ns_mov_b32 s{sK0+1}, {NLOG2E}")
    A("s_waitcnt lgkmcnt(0)")
    epoch_finish(A)
    A(f"v_mov_b32 v{vEp}, s{sEP}")
    P.stamp("setup")

    def wu(st): return 2 * st + 1 if st < 7 else 7 + st
    ftok = {}
    xtok = {}
    def rd_frag(st, i):
        ks, q = i // 4, i % 4
        mat, ft = q >> 1, q & 1
        slot = wu(st) % 5
        base = vWr + ft + (2 if slot == 4 else 0)
        off = (0 if slot == 4 else slot * 16384) + mat * 8192 + ks * 2048
        b = FB + 4 * (i % 8)
        A.lgop(f"ds_read_b64_tr_b16 v[{b}:{b+1}], v{base} offset:{off}")
        ftok[(st, i)] = A.lgop(f"ds_read_b64_tr_b16 v[{b+2}:{b+3}], v{base} offset:{off+512}")
    def rd_x(c, ks):
        slot = (2 * c) % 5
        r = XF + 16 * c + 4 * ks
        if slot == 4:
            A(f"v_add_u32 v{TMP}, 0x10000, v{vXr+ks}")
            xtok[(c, ks)] = A.lgop(f"ds_read_b128 v[{r}:{r+3}], v{TMP}")
        else:
            xtok[(c, ks)] = A.lgop(f"ds_read_b128 v[{r}:{r+3}], v{vXr+ks} offset:{slot*16384}")
    next_unit = [5]
    pend = []
    def free_units(upto):
        while next_unit[0] <= min(upto + 5, 25):
            pend.extend(issue_unit(next_unit[0])); next_unit[0] += 1
    def drain(n):
        for _ in range(n):
            if pend: pend.pop(0)()
    st_tok = {}
    def barrier(st):
        drain(99)
        need = tok[wu(st)] if st < 14 else None
        if st == 9: need = max(need, st_tok["A"])
        if opt.prof and not opt.lightprof: P.stamp(f"preB{st}")
        A.wait_all(vm=False)
        if need is not None: A.wait(vm=need)
        A("s_barrier")
        if (opt.prof and (not opt.lightprof or st in (0, 1, 7, 8, 14))) or opt.echo: P.stamp(f"B{st}")
        if st == 9:
            A.vmop(f"buffer_store_dword v{vEp}, v{vFlag}, s[{sWS}:{sWS+3}], 0 offen sc1")
        if st >= 1: free_units(wu(st - 1))

    def epilogue1(hf, mid=None):
        for ft in range(2):
            G, U = ACC + 16 * ft, ACC + 32 + 16 * ft
            for blk in range(2):
                t = TMP; o = TMP + 16 + 4 * blk
                for p in range(4):
                    r = 8 * blk + 2 * p
                    A(f"v_pk_mul_f32 v[{t+2*p}:{t+2*p+1}], v[{G+r}:{G+r+1}], s[{sK0}:{sK0+1}]")
                for p in range(8): A(f"v_exp_f32 v{t+p}, v{t+p}")
                for p in range(4):
                    r = 8 * blk + 2 * p
                    A(f"v_pk_mul_f32 v[{t+8+2*p}:{t+9+2*p}], v[{G+r}:{G+r+1}], v[{U+r}:{U+r+1}]")
                for p in range(4): A(f"v_pk_add_f32 v[{t+2*p}:{t+2*p+1}], v[{t+2*p}:{t+2*p+1}], 1.0 op_sel_hi:[1,0]")
                for p in range(8): A(f"v_rcp_f32 v{t+p}, v{t+p}")
                for p in range(4): A(f"v_pk_mul_f32 v[{t+8+2*p}:{t+9+2*p}], v[{t+8+2*p}:{t+9+2*p}], v[{t+2*p}:{t+2*p+1}]")
                for p in range(4): A(f"v_cvt_pk_bf16_f32 v{o+p}, v{t+8+2*p}, v{t+9+2*p}")
                if blk == 0: A(f"s_add_u32 s{sT2}, s{sHst}, {hf*8192 + ft*4096}")
                st_tok["AB"[hf]] = A.vmop(f"buffer_store_dwordx4 v[{o}:{o+3}], v{vHst}, s[{sWS}:{sWS+3}], s{sT2} offen offset:{blk*2048} sc1")
            if ft == 0 and mid: mid()

    barrier(0)
    for ks in range(4): rd_x(0, ks)
    for i in range(6): rd_frag(0, i)
    for st in range(14):
        c = st % 7
        for i in range(16):
            ks, q = i // 4, i % 4
            need = ftok[(st, i)]
            if st < 7: need = max(need, xtok[(c, ks)])
            A.wait(lg=need)
            b = FB + 4 * (i % 8); x = XF + 16 * c + 4 * ks; a = ACC + 16 * q
            cin = "0" if (c == 0 and ks == 0) else f"v[{a}:{a+15}]"
            A(f"v_mfma_f32_32x32x16_bf16 v[{a}:{a+15}], v[{b}:{b+3}], v[{x}:{x+3}], {cin}")
            if i <= 9: rd_frag(st, i + 6)
            if i == 6 and st < 7: free_units(2 * st)
            if i == 12:
                barrier(st + 1)
                if st < 13:
                    if st + 1 < 7: rd_x(st + 1, 0)
                    rd_frag(st + 1, 0); rd_frag(st + 1, 1)
                else:
                    A(f"s_lshr_b32 s{sT0}, s{sM2}, 1\ns_lshl_b32 s{sT0}, s{sT0}, 7\ns_add_u32 s{sXo}, s{sT0}, {WS_F2}")
                    poll_issue(A, sXo, 14)
            elif i == 13 and st < 13:
                rd_frag(st + 1, 2); rd_frag(st + 1, 3)
                if st + 1 < 7: rd_x(st + 1, 1)
            elif i == 14 and st < 13:
                rd_frag(st + 1, 4)
                if st + 1 < 7: rd_x(st + 1, 2)
            elif i == 15 and st < 13:
                rd_frag(st + 1, 5)
                if st + 1 < 7: rd_x(st + 1, 3)
            if not opt.spread: drain(2 if i != 12 else 0)
            elif (st < 7 and i % 2 == 1) or (st >= 7 and i % 4 == 1) or (st == 6 and i >= 13) or (st == 13 and i >= 13):
                v0 = A.vm
                while pend and A.vm == v0: drain(1)
                if st == 6 and i == 15: drain(99)
        if st == 6: epilogue1(0)
    drain(99)

    HR = XF
    HD = 12
    vHo = 2
    vDr = 4
    AC2 = ACC
    htok = {}
    def issue_h(st):
        r = HR + 8 * (st % HD)
        A.vmop(f"buffer_load_dwordx4 v[{r}:{r+3}], v{vHo}, s[{sH}:{sH+3}], s{sHo} offen sc1")
        htok[st] = A.vmop(f"buffer_load_dwordx4 v[{r+4}:{r+7}], v{vHo+1}, s[{sH}:{sH+3}], s{sHo} offen sc1")
        wrap_add(A, sHo, 16384, 229376)
        if st == 13: A(f"s_add_u32 s{sHo}, s{sHo}, 8192")
    def mid():
        A(f"s_lshr_b32 s{sT0}, s{sWAVE}, 1\ns_lshl_b32 s{sT0}, s{sT0}, 10")
        A(f"v_or_b32 v{vHo}, s{sT0}, v{vHst}\nv_xor_b32 v{vHo+1}, 0x400, v{vHo}")
        A(f"v_mov_b32 v{vDr}, v1\nv_xor_b32 v{vDr+1}, 64, v1\nv_add_u32 v{vDr+2}, 0x10000, v{vDr}\nv_add_u32 v{vDr+3}, 0x10000, v{vDr+1}")
        poll_check(A, sXo, 14, 8)
        P.stamp("flagA")
        for st in range(opt.pdh): issue_h(st)
    epilogue1(1, mid)
    P.stamp("epiB")
    wtok = {}
    def rd_wd(st):
        slot = (21 + st // 2) % 5
        off = (0 if slot == 4 else slot * 16384) + (st & 1) * 2048
        for dt in range(2):
            base = vDr + dt + (2 if slot == 4 else 0)
            b = FB + 8 * (st % 2) + 4 * dt
            A.lgop(f"ds_read_b64_tr_b16 v[{b}:{b+1}], v{base} offset:{off}")
            wtok[(st, dt)] = A.lgop(f"ds_read_b64_tr_b16 v[{b+2}:{b+3}], v{base} offset:{off+512}")
    A.wait(vm=dtok[0])
    rd_wd(0)
    FLAG_STEP = 3
    POLL_STEP = 14 - opt.pdh
    for st in range(28):
        if st == FLAG_STEP:
            A.wait(vm=st_tok["B"])
            A("s_barrier")
            A.vmop(f"buffer_store_dword v{vEp}, v{vFlag}, s[{sWS}:{sWS+3}], 0 offen offset:2048 sc1")
        if st == POLL_STEP:
            A.wait_all(vm=False)
            A(f"s_add_u32 s{sXo}, s{sXo}, 2048")
            poll_issue(A, sXo, 14)
            poll_check(A, sXo, 14, 8)
            P.stamp("flagB")
        if st + opt.pdh < 28: issue_h(st + opt.pdh)
        if st == 24:
            A.wait_all(vm=False)
            A(f"s_lshl_b32 s{sXo}, s{sN2}, 7\ns_add_u32 s{sXo}, s{sXo}, {WS_F3}")
            if not opt.nossm:
                poll_issue(A, sXo, 32)
                poll_check(A, sXo, 32, 8)
            P.stamp("flagY")
            ATS = (21 + 10) % 5
            A(f"v_lshrrev_b32 v{TMP}, 3, v0\nv_lshlrev_b32 v{TMP}, 12, v{TMP}\nv_and_b32 v{TMP+1}, 7, v0\nv_lshl_add_u32 v{TMP}, v{TMP+1}, 4, v{TMP}")
            A(f"v_add_u32 v{TMP+1}, {32768-1024}, v{TMP}")
            A(f"s_lshl_b32 s{sT0}, s{sN2}, 2\ns_add_u32 s{sT0}, s{sT0}, s{sWAVE}\ns_lshl_b32 s{sT0}, s{sT0}, 16\ns_lshl_b32 s{sT1}, s{sM2}, 7\ns_add_u32 s{sT0}, s{sT0}, s{sT1}\ns_add_u32 s{sT2}, s{sT0}, {WS_AT}")
            A(f"s_add_u32 m0, s{sLB}, {ATS*16384}")
            A.vmop(f"buffer_load_dwordx4 v{TMP}, s[{sWS}:{sWS+3}], s{sT2} offen sc1 lds")
            at_tok = A.vmop(f"buffer_load_dwordx4 v{TMP+1}, s[{sWS}:{sWS+3}], s{sT2} offen offset:1024 sc1 lds")
            vG = TMP + 2
            A(f"v_and_b32 v{TMP+4}, 31, v0\nv_lshlrev_b32 v{TMP+4}, 3, v{TMP+4}")
            A(f"s_lshl_b32 s{sT0}, s{sM2}, 1\ns_lshr_b32 s{sT1}, s{sWAVE}, 1\ns_add_u32 s{sT0}, s{sT0}, s{sT1}\ns_lshl_b32 s{sWo}, s{sT0}, 8\ns_add_u32 s{sWo}, s{sWo}, {WS_GATE}")
            g_tok = A.vmop(f"buffer_load_dwordx2 v[{vG}:{vG+1}], v{TMP+4}, s[{sWS}:{sWS+3}], s{sWo} offen sc1")
        need = htok[st]
        if st + 1 < 28: need = max(need, dtok[st + 1])
        A.wait(vm=need)
        if st + 1 < 28: rd_wd(st + 1)
        r = HR + 8 * (st % HD)
        for dt in range(2):
            A.wait(lg=wtok[(st, dt)])
            for tt in range(2):
                a = AC2 + 16 * (dt + 2 * tt); b = FB + 8 * (st % 2) + 4 * dt
                cin = "0" if st == 0 else f"v[{a}:{a+15}]"
                A(f"v_mfma_f32_32x32x16_bf16 v[{a}:{a+15}], v[{b}:{b+3}], v[{r+4*tt}:{r+4*tt+3}], {cin}")
        if st + 10 < 28:
            for f in issue_wd(st + 10): f()
    P.stamp("g2loop")
    RS = [2, 3, 0]
    A(f"v_add_u32 v{TMP+5}, s{sLB}, v{vHst}")
    for a in range(1, 4):
        for k in range(4):
            r = AC2 + 16 * a + 4 * k
            A.lgop(f"ds_write_b128 v{TMP+5}, v[{r}:{r+3}] offset:{RS[a-1]*16384 + k*1024}")
    for a in range(1, 4): A(f"v_xor_b32 v{TMP+5+a}, {a << 12}, v{TMP+5}")
    A(f"v_lshrrev_b32 v{TMP+9}, 5, v0\nv_lshlrev_b32 v{TMP+9}, 12, v{TMP+9}\nv_bfe_u32 v{TMP+10}, v0, 2, 2\nv_lshl_add_u32 v{TMP+9}, v{TMP+10}, 7, v{TMP+9}")
    A(f"v_bfe_u32 v{TMP+10}, v0, 4, 1\nv_lshl_add_u32 v{TMP+9}, v{TMP+10}, 5, v{TMP+9}\nv_and_b32 v{TMP+10}, 3, v0\nv_lshl_add_u32 v{TMP+9}, v{TMP+10}, 3, v{TMP+9}")
    A(f"s_and_b32 s{sT0}, s{sWAVE}, 1\ns_lshl_b32 s{sT0}, s{sT0}, 13\ns_lshr_b32 s{sT1}, s{sWAVE}, 1\ns_lshl_b32 s{sT1}, s{sT1}, 6\ns_add_u32 s{sT0}, s{sT0}, s{sT1}")
    A(f"v_add_u32 v{TMP+9}, s{sT0}, v{TMP+9}")
    A(f"v_and_b32 v{TMP+10}, 31, v0\nv_mul_u32_u24 v{TMP+10}, 896, v{TMP+10}\nv_lshrrev_b32 v{TMP+11}, 5, v0\nv_lshl_add_u32 v{TMP+10}, v{TMP+11}, 5, v{TMP+10}")
    A(f"s_lshl_b32 s{sT0}, s{sM2}, 1\ns_lshr_b32 s{sT1}, s{sWAVE}, 1\ns_add_u32 s{sT0}, s{sT0}, s{sT1}\ns_mul_i32 s{sT2}, s{sT0}, 28672")
    A(f"s_lshl_b32 s{sT0}, s{sN2}, 1\ns_and_b32 s{sT1}, s{sWAVE}, 1\ns_add_u32 s{sT0}, s{sT0}, s{sT1}\ns_lshl_b32 s{sT0}, s{sT0}, 6\ns_add_u32 s{sT2}, s{sT2}, s{sT0}")
    A("s_waitcnt vmcnt(0) lgkmcnt(0)")
    A("s_barrier")
    PR = XF
    rt = []
    for a in range(1, 4):
        for k in range(4):
            r = PR + 16 * (a - 1) + 4 * k
            t = A.lgop(f"ds_read_b128 v[{r}:{r+3}], v{TMP+5+a} offset:{RS[a-1]*16384 + k*1024}")
        rt.append(t)
    vG = TMP + 2
    top, ok = uid("gt"), uid("go")
    A(f"s_mov_b32 s{sSPIN}, 0")
    A.label(top)
    A(f"v_cmp_ne_u32 vcc, s{sEP}, v{vG+1}")
    A(f"s_cbranch_vccz {ok}")
    if opt.nossm: A(f"s_branch {ok}")
    A(f"s_add_u32 s{sSPIN}, s{sSPIN}, 1\ns_cmp_ge_u32 s{sSPIN}, {SPIN_MAX}\ns_cbranch_scc1 {ok}")
    A(f"buffer_load_dwordx2 v[{vG}:{vG+1}], v{TMP+4}, s[{sWS}:{sWS+3}], s{sWo} offen sc1")
    A("s_waitcnt vmcnt(0)")
    A(f"s_branch {top}")
    A.label(ok)
    A.wait(lg=rt[0])
    AT = FB
    ATS = (21 + 10) % 5
    for e in range(4):
        at = A.lgop(f"ds_read_b64_tr_b16 v[{AT+2*e}:{AT+2*e+1}], v{TMP+9} offset:{ATS*16384 + e*512}")
    A(f"v_lshlrev_b32 v{TMP+12}, 16, v{vG}\nv_and_b32 v{TMP+14}, 0xffff0000, v{vG}")
    for a in range(3):
        if a: A.wait(lg=rt[a])
        for p in range(8):
            A(f"v_pk_add_f32 v[{AC2+2*p}:{AC2+2*p+1}], v[{AC2+2*p}:{AC2+2*p+1}], v[{PR+16*a+2*p}:{PR+16*a+2*p+1}]")
    for p in range(8):
        A(f"v_pk_mul_f32 v[{AC2+2*p}:{AC2+2*p+1}], v[{AC2+2*p}:{AC2+2*p+1}], v[{TMP+14}:{TMP+15}] op_sel_hi:[1,0]")
    A.wait(lg=at)
    for p in range(8):
        A(f"v_lshlrev_b32 v{PR+2*p}, 16, v{AT+p}\nv_and_b32 v{PR+2*p+1}, 0xffff0000, v{AT+p}")
    for p in range(8):
        A(f"v_pk_fma_f32 v[{AC2+2*p}:{AC2+2*p+1}], v[{PR+2*p}:{PR+2*p+1}], v[{TMP+12}:{TMP+13}], v[{AC2+2*p}:{AC2+2*p+1}] op_sel_hi:[1,0,1]")
    for p in range(8):
        A(f"v_cvt_pk_bf16_f32 v{AT+8+p}, v{AC2+2*p}, v{AC2+2*p+1}")
    A(f"buffer_store_dwordx4 v[{AT+8}:{AT+11}], v{TMP+10}, s[{sO}:{sO+3}], s{sT2} offen")
    A(f"buffer_store_dwordx4 v[{AT+12}:{AT+15}], v{TMP+10}, s[{sO}:{sO+3}], s{sT2} offen offset:16")
    P.stamp("end")
    P.flush(TMP)
    A("s_endpgm")
    return P.names

def gate_issue(A, vx, vw, vt):
    srd(A, sW, 30, 896)
    A(f"s_and_b32 s{sT0}, s{sM2}, 28\ns_lshl_b32 s{sT0}, s{sT0}, 6\ns_lshl_b32 s{sT1}, s{sSLOT}, 3\ns_add_u32 s{sT0}, s{sT0}, s{sT1}\ns_lshl_b32 s{sT1}, s{sWAVE}, 1\ns_add_u32 s{sXb}, s{sT0}, s{sT1}")
    A(f"s_mul_i32 s{sT2}, s{sXb}, 896")
    A(f"v_lshlrev_b32 v{vt}, 4, v0\nv_cmp_gt_u32 vcc, 56, v0\nv_mov_b32 v{vt+1}, 0x7ffff000\nv_cndmask_b32 v{vt}, v{vt+1}, v{vt}, vcc")
    A.vmop(f"buffer_load_dwordx4 v[{vx}:{vx+3}], v{vt}, s[{sX}:{sX+3}], s{sT2} offen")
    A.vmop(f"buffer_load_dwordx4 v[{vx+4}:{vx+7}], v{vt}, s[{sX}:{sX+3}], s{sT2} offen offset:896")
    return A.vmop(f"buffer_load_dwordx4 v[{vw}:{vw+3}], v{vt}, s[{sW}:{sW+3}], 0 offen")

def gate_compute(A, vx, vw, vt):
    a0, a1 = vt + 4, vt + 5
    A(f"v_mov_b32 v{a0}, 0\nv_mov_b32 v{a1}, 0")
    for k in range(4):
        A(f"v_dot2_f32_bf16 v{a0}, v{vx+k}, v{vw+k}, v{a0}")
        A(f"v_dot2_f32_bf16 v{a1}, v{vx+4+k}, v{vw+k}, v{a1}")
    A("s_nop 2")
    for m in ("row_shr:1 row_mask:0xf bank_mask:0xf bound_ctrl:0", "row_shr:2 row_mask:0xf bank_mask:0xf bound_ctrl:0", "row_shr:4 row_mask:0xf bank_mask:0xf bound_ctrl:0",
              "row_shr:8 row_mask:0xf bank_mask:0xf bound_ctrl:0", "row_bcast:15 row_mask:0xa bank_mask:0xf", "row_bcast:31 row_mask:0xc bank_mask:0xf"):
        A(f"v_add_f32_dpp v{a0}, v{a0}, v{a0} {m}")
        A(f"v_add_f32_dpp v{a1}, v{a1}, v{a1} {m}")
    t = vt + 6
    A(f"v_cvt_pk_bf16_f32 v{t}, v{a0}, v{a1}")
    A(f"v_lshlrev_b32 v{a0}, 16, v{t}\nv_and_b32 v{a1}, 0xffff0000, v{t}")
    A(f"v_mul_f32 v{a0}, {NLOG2E}, v{a0}\nv_mul_f32 v{a1}, {NLOG2E}, v{a1}")
    A(f"v_exp_f32 v{a0}, v{a0}\nv_exp_f32 v{a1}, v{a1}")
    A(f"v_add_f32 v{a0}, 1.0, v{a0}\nv_add_f32 v{a1}, 1.0, v{a1}")
    A(f"v_rcp_f32 v{a0}, v{a0}\nv_rcp_f32 v{a1}, v{a1}")
    A(f"v_cvt_pk_bf16_f32 v{t}, v{a0}, v{a1}")
    A(f"v_lshlrev_b32 v{a0}, 16, v{t}\nv_and_b32 v{a1}, 0xffff0000, v{t}")
    A(f"v_sub_f32 v{t}, 1.0, v{a0}\nv_sub_f32 v{t+1}, 1.0, v{a1}")
    A(f"v_cvt_pk_bf16_f32 v{vt}, v{a0}, v{t}\nv_cvt_pk_bf16_f32 v{vt+2}, v{a1}, v{t+1}")
    A(f"v_mov_b32 v{vt+1}, s{sEP}\nv_mov_b32 v{vt+3}, s{sEP}")
    A(f"s_lshl_b32 s{sT0}, s{sXb}, 3\ns_add_u32 s{sT0}, s{sT0}, {WS_GATE}")
    A(f"v_mov_b32 v{t}, 0x7ffff000\nv_writelane_b32 v{t}, s{sT0}, 63")
    return A.vmop(f"buffer_store_dwordx4 v[{vt}:{vt+3}], v{t}, s[{sWS}:{sWS+3}], 0 offen sc1")

PK = [False]
def cmul(A, d, a, b, t):
    if not PK[0]:
        A(f"v_mul_f32 v{t}, v{a+1}, v{b+1}\nv_mul_f32 v{t+1}, v{a+1}, v{b}")
        A(f"v_fma_f32 v{d+1}, v{a}, v{b+1}, v{t+1}\nv_fma_f32 v{d}, v{a}, v{b}, -v{t}")
        return
    A(f"v_pk_mul_f32 v[{t}:{t+1}], v[{a}:{a+1}], v[{b}:{b+1}] op_sel_hi:[1,0]")
    A(f"v_pk_fma_f32 v[{d}:{d+1}], v[{a}:{a+1}], v[{b}:{b+1}], v[{t}:{t+1}] op_sel:[1,1,0] op_sel_hi:[0,1,1] neg_lo:[1,0,0]")

def ssm_role(A, opt):
    PK[0] = opt.pk
    REG = 17408; PIECE = 69632; PITCH = 272; CP = 4160
    vPROF = 255
    P = Prof(A, opt.prof, vPROF)
    sP, sCH, sHW, sD, sDT, sDS, sRND, sRB = 92, 93, 94, 95, 96, 97, 98, 99
    A.label("L_ssm")
    if opt.nossm: A("s_endpgm")
    if opt.kprio: A(f"s_setprio {opt.kprio}")
    A(f"s_sub_u32 s{sP}, s2, 256\ns_lshr_b32 s{sCH}, s{sWAVE}, 1\ns_and_b32 s{sHW}, s{sWAVE}, 1")
    A(f"s_lshl_b32 s{sD}, s{sP}, 1\ns_add_u32 s{sD}, s{sD}, s{sCH}")
    A(f"s_lshl_b32 s{sT0}, s{sP}, 2")
    A(f"s_load_dword s{sDT}, s[18:19], s{sT0}\ns_load_dword s{sDS}, s[20:21], s{sT0}")
    A("v_lshrrev_b32 v1, 3, v0\nv_mul_u32_u24 v2, 896, v1\nv_and_b32 v3, 7, v0\nv_lshl_add_u32 v2, v3, 4, v2\nv_add_u32 v3, 6144, v2")
    A(f"s_lshl_b32 s{sT0}, s{sM2}, 2\ns_add_u32 s{sT0}, s{sT0}, s{sWAVE}\ns_mul_i32 s{sT2}, s{sT0}, 14336\ns_lshl_b32 s{sT1}, s{sN2}, 7\ns_add_u32 s{sT2}, s{sT2}, s{sT1}")
    A(f"s_lshl_b32 s{sT0}, s{sWAVE}, 11\ns_add_u32 m0, s{sT0}, {PIECE}")
    A.vmop(f"buffer_load_dwordx4 v2, s[{sX}:{sX+3}], s{sT2} offen lds")
    ptok = A.vmop(f"buffer_load_dwordx4 v3, s[{sX}:{sX+3}], s{sT2} offen offset:1024 lds")
    gtok = gate_issue(A, 16, 24, 28)
    RAW = 8
    A(f"s_lshl_b32 s{sT0}, s{sP}, 10\ns_lshl_b32 s{sT1}, s{sWAVE}, 8\ns_add_u32 s{sT0}, s{sT0}, s{sT1}")
    A(f"v_lshlrev_b32 v4, 2, v0\nv_add_u32 v5, s{sT0}, v4")
    for k in range(6):
        rtok = A.vmop(f"global_load_dword v{RAW+k}, v5, s[{6+2*k}:{7+2*k}]")
    A(f"s_mul_i32 s{sRB}, s{sWAVE}, {REG}")
    vWR, vFR = 6, 7
    A(f"v_add_u32 v{vWR}, s{sRB}, v4")
    A(f"v_and_b32 v36, 31, v0\nv_mul_u32_u24 v{vFR}, {PITCH}, v36\nv_lshrrev_b32 v37, 5, v0\nv_lshl_add_u32 v{vFR}, v37, 4, v{vFR}\nv_add_u32 v{vFR}, s{sRB}, v{vFR}")
    A("v_lshrrev_b32 v36, 4, v0\nv_bfe_u32 v37, v0, 2, 2\nv_and_b32 v38, 3, v0")
    A(f"v_lshlrev_b32 v39, 10, v36\nv_lshl_add_u32 v39, v37, 7, v39\nv_lshl_add_u32 v39, v38, 3, v39")
    A(f"s_lshl_b32 s{sT0}, s{sWAVE}, 5\ns_add_u32 s{sT0}, s{sT0}, {PIECE}\nv_add_u32 v39, s{sT0}, v39")
    A("v_and_b32 v40, 15, v0\nv_lshlrev_b32 v40, 12, v40\nv_lshl_add_u32 v40, v36, 4, v40")
    A("s_waitcnt lgkmcnt(0)")
    epoch_finish(A)
    A(f"s_lshl_b32 s{sT0}, s{sCH}, 4\ns_lshr_b32 s{sDT}, s{sDT}, s{sT0}\ns_lshl_b32 s{sDT}, s{sDT}, 16\ns_lshr_b32 s{sDS}, s{sDS}, s{sT0}\ns_lshl_b32 s{sDS}, s{sDS}, 16")
    A(f"v_mov_b32 v41, {LOG2E}\nv_mov_b32 v45, s{sDT}\nv_mul_f32 v42, v45, v41\nv_fma_f32 v43, v45, v41, -v42")
    A("v_fmac_f32 v43, 0x32a57060, v45")
    A("v_exp_f32 v42, v42\nv_mul_f32 v43, 0x3f317218, v43")
    A("v_fma_f32 v42, v42, v43, v42\nv_cvt_pk_bf16_f32 v42, v42, v42\nv_lshlrev_b32 v42, 16, v42")
    A(f"v_readfirstlane_b32 s{sDT}, v42")
    P.stamp("setup")
    A.wait(vm=ptok)
    A("s_barrier")
    for e in range(2):
        A.lgop(f"ds_read_b64_tr_b16 v[{48+4*e}:{49+4*e}], v39 offset:{e*4096}")
        t = A.lgop(f"ds_read_b64_tr_b16 v[{50+4*e}:{51+4*e}], v39 offset:{e*4096+512}")
    A(f"s_lshl_b32 s{sT0}, s{sN2}, 2\ns_add_u32 s{sT0}, s{sT0}, s{sWAVE}\ns_lshl_b32 s{sT0}, s{sT0}, 16\ns_lshl_b32 s{sT1}, s{sM2}, 7\ns_add_u32 s{sT0}, s{sT0}, s{sT1}\ns_add_u32 s{sT2}, s{sT0}, {WS_UT}")
    A.wait(lg=t)
    A.vmop(f"buffer_store_dwordx4 v[48:51], v40, s[{sWS}:{sWS+3}], s{sT2} offen sc1")
    A.vmop(f"buffer_store_dwordx4 v[52:55], v40, s[{sWS}:{sWS+3}], s{sT2} offen offset:64 sc1")
    A.wait(vm=gtok)
    gate_compute(A, 16, 24, 28)
    P.stamp("piece")
    vF1, vF3, vEp = 14, 15, 5
    A(f"s_lshl_b32 s{sT0}, s{sN2}, 7\ns_lshl_b32 s{sT1}, s{sM2}, 2\ns_add_u32 s{sT0}, s{sT0}, s{sT1}\ns_add_u32 s{sT0}, s{sT0}, {WS_F1}")
    A(f"s_lshl_b32 s{sT1}, s{sP}, 2\ns_add_u32 s{sT1}, s{sT1}, {WS_F3}")
    A(f"s_cmp_eq_u32 s{sWAVE}, 0\ns_cselect_b32 s{sT0}, s{sT0}, 0x7ffff000\ns_cselect_b32 s{sT1}, s{sT1}, 0x7ffff000")
    A.wait(vm=rtok)
    A(f"v_mov_b32 v{vF1}, 0x7ffff000\nv_mov_b32 v{vF3}, 0x7ffff000\nv_writelane_b32 v{vF1}, s{sT0}, 0\nv_writelane_b32 v{vF3}, s{sT1}, 0\nv_mov_b32 v{vEp}, s{sEP}")
    KA = 64
    KF = 96
    for r in range(16): A(f"v_mov_b32 v{KA+r}, 0")
    A(f"s_mov_b32 s{sRND}, 0")
    A.label("L_kround")
    U = 16
    for k in range(6): A(f"v_lshlrev_b32 v{U+k}, 16, v{RAW+k}")
    for k in range(6): A(f"v_lshrrev_b32 v{RAW+k}, 16, v{RAW+k}")
    for k in range(4): A(f"v_mul_f32 v{U+k}, s{sDT}, v{U+k}")
    A(f"v_mul_f32 v{U}, {LOG2E}, v{U}\nv_mul_f32 v{U+1}, 0.15915494, v{U+1}")
    E1, E8, E256, W0, T = 22, 24, 26, 28, 30
    cmul(A, W0, U + 4, U + 2, T)
    for (E, sh) in ((E1, 0), (E8, 3), (E256, 8)):
        if sh:
            A(f"v_ldexp_f32 v32, v{U}, {sh}\nv_ldexp_f32 v33, v{U+1}, {sh}\nv_exp_f32 v32, v32\nv_fract_f32 v33, v33")
        else:
            A(f"v_exp_f32 v32, v{U}\nv_fract_f32 v33, v{U+1}")
        A(f"v_cos_f32 v{E}, v33\nv_sin_f32 v{E+1}, v33")
        A(f"v_mul_f32 v{E}, v{E}, v32\nv_mul_f32 v{E+1}, v{E+1}, v32")
    pk = [0]
    def put(reg, rows, neg):
        o = 56 + (pk[0] % 8); pk[0] += 1
        A(f"v_cvt_pk_bf16_f32 v{o}, v{reg}, {'-' if neg else ''}v{reg+1}")
        for r in rows: A(f"ds_write_b32 v{vWR}, v{o} offset:{r*PITCH}")
    prow = {0:[0],1:[1],2:[2],3:[3],4:[4],5:[5],6:[6],7:[7],256:[8,9],258:[10],260:[11,12,13],262:[14],264:[15],
            512:[16],516:[17],520:[18,19],768:[20],772:[21],776:[22,23],1024:[24],1032:[25],1280:[26],1288:[27],1536:[28],1544:[29],1792:[30],1800:[31]}
    qs, ps = [], []
    Q = 34
    qs.append(lambda: (A("v_mov_b32 v55, 0x3f80"), A(f"ds_write_b32 v{vWR}, v55 offset:{32*PITCH}")))
    qs.append(lambda: put(E8, [33], False))
    for j in range(2, 32):
        qs.append(lambda j=j: (cmul(A, Q, E8 if j == 2 else Q, E8, 36), put(Q, [32 + j], False)))
    PC, P2, P4, P6, P8 = 38, 40, 42, 44, 46
    ps.append(lambda: put(W0, prow[0], True))
    src = W0
    for l in range(1, 8):
        dst = {2: P2, 4: P4, 6: P6}.get(l, PC)
        ps.append(lambda l=l, src=src, dst=dst: (cmul(A, dst, src, E1, 48), put(dst, prow[l], True)))
        src = dst
    ps.append(lambda: cmul(A, P8, W0, E8, 48))
    for (reg, base, n) in ((P2, 2, 1), (P6, 6, 1), (P4, 4, 3), (W0, 0, 7), (P8, 8, 7)):
        for k in range(1, n + 1):
            ps.append(lambda reg=reg, l=base + 256 * k: (cmul(A, reg, reg, E256, 48), put(reg, prow[l], True)))
    for i in range(max(len(qs), len(ps))):
        if i < len(qs): qs[i]()
        if i < len(ps): ps[i]()
    A("s_waitcnt lgkmcnt(0)")
    kt = []
    def krd(ks):
        A.lgop(f"ds_read_b128 v[{KF+8*ks}:{KF+8*ks+3}], v{vFR} offset:{ks*32}")
        kt.append(A.lgop(f"ds_read_b128 v[{KF+8*ks+4}:{KF+8*ks+7}], v{vFR} offset:{32*PITCH + ks*32}"))
    for ks in range(6): krd(ks)
    for ks in range(8):
        A.wait(lg=kt[ks])
        A(f"v_mfma_f32_32x32x16_bf16 v[{KA}:{KA+15}], v[{KF+8*ks}:{KF+8*ks+3}], v[{KF+8*ks+4}:{KF+8*ks+7}], v[{KA}:{KA+15}]")
        if ks + 6 < 8: krd(ks + 6)
    A(f"s_cmp_eq_u32 s{sRND}, 1\ns_cbranch_scc1 L_kdone")
    A(f"s_mov_b32 s{sRND}, 1")
    A("s_waitcnt vmcnt(0)\ns_barrier")
    A(f"buffer_store_dword v{vEp}, v{vF1}, s[{sWS}:{sWS+3}], 0 offen sc1")
    A("s_branch L_kround")
    A.label("L_kdone")
    A("s_nop 7")
    P.stamp("kgen")
    sUB, sKB, sXB = sXo, sWo, sDo
    A(f"s_mul_i32 s{sUB}, s{sCH}, {2*REG}\ns_add_u32 s{sXB}, s{sUB}, {REG}\ns_add_u32 s{sKB}, s{sXB}, 4096")
    A(f"v_lshlrev_b32 v4, 4, v0\nv_add_u32 v16, s{sXB}, v4")
    A(f"s_cmp_eq_u32 s{sHW}, 0\ns_cbranch_scc1 L_even1")
    for k in range(4): A(f"ds_write_b128 v16, v[{KA+4*k}:{KA+4*k+3}] offset:{k*1024}")
    A(f"s_lshr_b32 s{sT0}, s{sP}, 5\ns_lshl_b32 s{sHo}, s{sT0}, 7\ns_add_u32 s{sHo}, s{sHo}, {WS_F1}")
    A("s_waitcnt lgkmcnt(0)")
    A("s_barrier")
    poll_issue(A, sHo, 32)
    poll_check(A, sHo, 32, 17)
    P.stamp("flagU")
    A(f"s_lshl_b32 s{sT2}, s{sD}, 12\ns_add_u32 s{sT2}, s{sT2}, {WS_UT}")
    for k in range(4): A(f"buffer_load_dwordx4 v[{20+4*k}:{23+4*k}], v4, s[{sWS}:{sWS+3}], s{sT2} offen offset:{k*1024} sc1")
    A(f"v_lshrrev_b32 v17, 4, v0\nv_mul_u32_u24 v17, {CP}, v17\nv_and_b32 v18, 15, v0\nv_lshl_add_u32 v17, v18, 2, v17\nv_add_u32 v17, s{sUB}, v17\nv_mov_b32 v18, 0")
    A("ds_write_b32 v17, v18")
    A(f"v_add_u32 v17, s{sUB}, v4")
    A("s_waitcnt vmcnt(0)")
    for k in range(4): A(f"ds_write_b128 v17, v[{20+4*k}:{23+4*k}] offset:{32 + k*1024}")
    for k in range(4): A(f"ds_read_b32 v{36+k}, v17 offset:{28 + k*1024}")
    for k in range(4): A(f"v_add_u32 v{56+k}, {2*CP + 36 + k*1024}, v17\nv_add_u32 v{60+k}, {3*CP + 36 + k*1024}, v17")
    for k in range(4):
        A(f"ds_write2_b32 v{56+k}, v{20+4*k}, v{21+4*k} offset0:0 offset1:1")
        A(f"ds_write2_b32 v{56+k}, v{22+4*k}, v{23+4*k} offset0:2 offset1:3")
    A("s_waitcnt lgkmcnt(8)")
    for k in range(4):
        A(f"v_alignbit_b32 v{40+4*k}, v{20+4*k}, v{36+k}, 16")
        for i in range(1, 4): A(f"v_alignbit_b32 v{40+4*k+i}, v{20+4*k+i}, v{20+4*k+i-1}, 16")
    for k in range(4):
        A(f"ds_write_b128 v17, v[{40+4*k}:{43+4*k}] offset:{CP + 32 + k*1024}")
        A(f"ds_write2_b32 v{60+k}, v{40+4*k}, v{41+4*k} offset0:0 offset1:1")
        A(f"ds_write2_b32 v{60+k}, v{42+4*k}, v{43+4*k} offset0:2 offset1:3")
    A("s_branch L_join1")
    A.label("L_even1")
    A("s_barrier")
    for k in range(4): A(f"ds_read_b128 v[{20+4*k}:{23+4*k}], v16 offset:{k*1024}")
    A(f"v_lshlrev_b32 v17, 3, v0\nv_add_u32 v17, s{sKB}, v17\nv_mov_b32 v18, 0\nv_mov_b32 v19, 0\nds_write_b64 v17, v[18:19]")
    A(f"v_and_b32 v36, 31, v0\nv_lshlrev_b32 v36, 4, v36\nv_add_u32 v36, s{sKB}, v36\nv_lshrrev_b32 v37, 5, v0")
    A("v_lshl_add_u32 v38, v37, 3, v36\nv_lshl_add_u32 v39, v37, 9, v36\nv_lshl_add_u32 v40, v37, 10, v36")
    A("v_and_b32 v41, 1, v0\nv_cmp_eq_u32 vcc, 1, v41")
    A("s_waitcnt lgkmcnt(1)")
    for p in range(8): A(f"v_pk_add_f32 v[{KA+2*p}:{KA+2*p+1}], v[{KA+2*p}:{KA+2*p+1}], v[{20+2*p}:{21+2*p}]")
    r = lambda i: f"v{KA+i}"
    A(f"v_cvt_pk_bf16_f32 v20, {r(0)}, {r(1)}\nv_cvt_pk_bf16_f32 v21, {r(2)}, {r(3)}\nv_cvt_pk_bf16_f32 v22, {r(4)}, {r(5)}\nv_cvt_pk_bf16_f32 v23, {r(6)}, {r(7)}")
    A("ds_write_b64 v38, v[20:21] offset:512\nds_write_b64 v38, v[22:23] offset:1024")
    A(f"v_cvt_pk_bf16_f32 v24, {r(8)}, {r(8)}\nv_cvt_pk_bf16_f32 v25, {r(8)}, {r(9)}\nv_cvt_pk_bf16_f32 v26, {r(9)}, {r(9)}\nv_cvt_pk_bf16_f32 v27, {r(10)}, {r(10)}")
    A("ds_write_b128 v39, v[24:27] offset:1536")
    for e in range(2):
        a0, a8, o = 12 + 2 * e, 13 + 2 * e, 28 + 4 * e
        A(f"v_cndmask_b32 v41, {r(a0)}, {r(a8)}, vcc")
        A(f"v_cvt_pk_bf16_f32 v{o}, {r(a0)}, {r(a0)}\nv_cvt_pk_bf16_f32 v{o+1}, {r(a0)}, {r(a0)}\nv_cvt_pk_bf16_f32 v{o+2}, v41, {r(a8)}\nv_cvt_pk_bf16_f32 v{o+3}, {r(a8)}, {r(a8)}")
        A(f"ds_write_b128 v40, v[{o}:{o+3}] offset:{2560 + 512*e}")
    if opt.prof: P.n -= 1; P.names.pop(); P.stamp("flagU")
    A.label("L_join1")
    vU, vK = 6, 7
    A("v_lshrrev_b32 v16, 5, v0\nv_bfe_u32 v17, v0, 4, 1\nv_bfe_u32 v18, v0, 2, 2\nv_and_b32 v19, 3, v0")
    A(f"v_mul_u32_u24 v{vU}, {CP}, v18\nv_lshl_add_u32 v{vU}, v16, 5, v{vU}\nv_lshl_add_u32 v{vU}, v19, 3, v{vU}\nv_lshlrev_b32 v8, 4, v17\nv_sub_u32 v{vU}, v{vU}, v8")
    A(f"s_lshl_b32 s{sT0}, s{sHW}, 8\ns_add_u32 s{sT1}, s{sUB}, s{sT0}\ns_add_u32 s{sT1}, s{sT1}, 24\nv_add_u32 v{vU}, s{sT1}, v{vU}")
    A(f"v_and_b32 v9, 15, v0\nv_sub_u32 v9, v9, v16\nv_lshlrev_b32 v9, 5, v9\nv_add_u32 v{vK}, v9, v8")
    A(f"s_sub_u32 s{sT1}, s{sKB}, s{sT0}\ns_add_u32 s{sT1}, s{sT1}, {512-192}\nv_add_u32 v{vK}, s{sT1}, v{vK}")
    A("s_waitcnt lgkmcnt(0)\ns_barrier")
    P.stamp("prep")
    if opt.cprio != opt.kprio: A(f"s_setprio {opt.cprio}")
    CA = 16; SET = [64, 128]
    def loads(rho):
        b = SET[rho & 1]; L = []
        for i in range(8):
            L.append(f"ds_read_b64_tr_b16 v[{b+4*i}:{b+4*i+1}], v{vU} offset:{64*rho + 512*i + 8}")
            L.append(f"ds_read_b64_tr_b16 v[{b+4*i+2}:{b+4*i+3}], v{vU} offset:{64*rho + 512*i}")
            L.append(f"ds_read_b128 v[{b+32+4*i}:{b+32+4*i+3}], v{vK} offset:{192 - 64*rho + 512*i}")
        return L
    for x in loads(0): A(x)
    first = set()
    for rho in range(4):
        A("s_waitcnt lgkmcnt(0)")
        b = SET[rho & 1]
        nxt = loads(rho + 1) if rho < 3 else []
        pairs = [(be, de) for be in range(8) for de in range(8 - be)]
        for (be, de) in pairs:
            a = CA + 4 * (be + de)
            cin = f"v[{a}:{a+3}]" if (be + de) in first else "0"
            first.add(be + de)
            A(f"v_mfma_f32_16x16x32_bf16 v[{a}:{a+3}], v[{b+4*be}:{b+4*be+3}], v[{b+32+4*de}:{b+32+4*de+3}], {cin}")
            if nxt: A(nxt.pop(0))
    P.stamp("conv")
    A(f"v_lshlrev_b32 v4, 4, v0\nv_add_u32 v8, s{sXB}, v4")
    A("v_and_b32 v9, 15, v0\nv_lshlrev_b32 v9, 5, v9\nv_lshrrev_b32 v10, 4, v0\nv_lshl_add_u32 v9, v10, 3, v9")
    A(f"s_lshl_b32 s{sT0}, s{sHW}, 11\ns_add_u32 s{sT1}, s{sUB}, s{sT0}\nv_add_u32 v10, s{sT1}, v9")
    A(f"s_lshl_b32 s{sT2}, s{sD}, 12\ns_add_u32 s{sT2}, s{sT2}, s{sT0}\ns_add_u32 s{sT2}, s{sT2}, {WS_AT}")
    for k in range(4): A(f"ds_read_b64 v[{80+2*k}:{81+2*k}], v10 offset:{32 + 512*k}")
    A(f"s_cmp_eq_u32 s{sHW}, 0\ns_cbranch_scc1 L_even2")
    for k in range(4): A(f"ds_write_b128 v8, v[{CA+4*k}:{CA+4*k+3}] offset:{12800 + k*1024}")
    A("s_waitcnt lgkmcnt(0)\ns_barrier")
    for k in range(4): A(f"ds_read_b128 v[{64+4*k}:{67+4*k}], v8 offset:{8704 + k*1024}")
    for k in range(16): A(f"v_mov_b32 v{CA+k}, v{CA+16+k}")
    A("s_branch L_join2")
    A.label("L_even2")
    for k in range(4): A(f"ds_write_b128 v8, v[{CA+16+4*k}:{CA+16+4*k+3}] offset:{8704 + k*1024}")
    A("s_waitcnt lgkmcnt(0)\ns_barrier")
    for k in range(4): A(f"ds_read_b128 v[{64+4*k}:{67+4*k}], v8 offset:{12800 + k*1024}")
    A.label("L_join2")
    for k in range(8): A(f"v_lshlrev_b32 v{96+2*k}, 16, v{80+k}\nv_and_b32 v{97+2*k}, 0xffff0000, v{80+k}")
    for k in range(16): A(f"v_fmac_f32 v{CA+k}, s{sDS}, v{96+k}")
    A("s_waitcnt lgkmcnt(0)")
    for p in range(8): A(f"v_pk_add_f32 v[{CA+2*p}:{CA+2*p+1}], v[{CA+2*p}:{CA+2*p+1}], v[{64+2*p}:{65+2*p}]")
    for p in range(8): A(f"v_cvt_pk_bf16_f32 v{80+p}, v{CA+2*p}, v{CA+2*p+1}")
    for k in range(4): A(f"buffer_store_dwordx2 v[{80+2*k}:{81+2*k}], v9, s[{sWS}:{sWS+3}], s{sT2} offen offset:{512*k} sc1")
    A("s_waitcnt vmcnt(0)\ns_barrier")
    A(f"buffer_store_dword v{vEp}, v{vF3}, s[{sWS}:{sWS+3}], 0 offen sc1")
    P.stamp("end")
    P.flush(4)
    A("s_endpgm")
    return P.names

def aux_role(A, opt):
    A.label("L_aux")
    gtok = gate_issue(A, 16, 24, 28)
    A("s_waitcnt lgkmcnt(0)")
    epoch_finish(A)
    A.wait(vm=gtok)
    gate_compute(A, 16, 24, 28)
    A(f"s_cmp_lg_u32 s2, 224\ns_cbranch_scc1 L_end\ns_cmp_lg_u32 s{sWAVE}, 0\ns_cbranch_scc1 L_end")
    A(f"s_mov_b32 s{sSPIN}, 0")
    A("v_and_b32 v1, 15, v0\nv_min_u32 v1, 13, v1\nv_lshrrev_b32 v2, 4, v0\nv_lshlrev_b32 v2, 7, v2\nv_lshl_add_u32 v1, v1, 2, v2")
    A("v_lshlrev_b32 v2, 4, v0\nv_add_u32 v2, 4, v2")
    A.label("L_upd")
    A(f"s_mov_b32 s{sT0}, {WS_F2}")
    for k in range(4): A(f"buffer_load_dword v{40+k}, v1, s[{sWS}:{sWS+3}], s{sT0} offen offset:{512*k} sc1")
    for k in range(16):
        if k % 4 == 0: A(f"s_mov_b32 s{sT0}, {WS_GATE + 1024*k}")
        A(f"buffer_load_dword v{44+k}, v2, s[{sWS}:{sWS+3}], s{sT0} offen offset:{1024*(k%4)} sc1")
    A("s_waitcnt vmcnt(0)")
    A("v_mov_b32 v3, 0")
    for k in range(4 if opt.nossm else 20): A(f"v_xor_b32 v4, s{sEP}, v{40+k}\nv_or_b32 v3, v3, v4")
    A("v_cmp_ne_u32 vcc, 0, v3")
    A("s_cbranch_vccz L_upd_ok")
    A(f"s_add_u32 s{sSPIN}, s{sSPIN}, 1\ns_cmp_ge_u32 s{sSPIN}, {SPIN_MAX}\ns_cbranch_scc1 L_upd_ok")
    A("s_sleep 8\ns_branch L_upd")
    A.label("L_upd_ok")
    A(f"v_mov_b32 v3, 0x7ffff000\nv_writelane_b32 v3, 0, 0\nv_mov_b32 v4, s{sEP}")
    A(f"buffer_store_dword v4, v3, s[{sWS}:{sWS+3}], 0 offen sc1")
    A("s_endpgm")

def build(opt):
    A = Asm()
    A(f"s_cmp_ge_u32 s2, {NWG}\ns_cbranch_scc1 L_end")
    if opt.prof or opt.echo: A("s_memrealtime s[38:39]")
    A("s_load_dwordx16 s[4:19], s[0:1], 0\ns_load_dwordx16 s[20:35], s[0:1], 64\ns_load_dwordx2 s[36:37], s[0:1], 128")
    A(f"v_lshrrev_b32 v1, 6, v0\nv_and_b32 v0, 63, v0\nv_readfirstlane_b32 s{sWAVE}, v1")
    A(f"s_and_b32 s{sXC}, s2, 7\ns_bfe_u32 s{sSLOT}, s2, 0x50003")
    A(f"s_and_b32 s{sT0}, s{sXC}, 3\ns_lshl_b32 s{sT0}, s{sT0}, 3\ns_lshr_b32 s{sT1}, s{sXC}, 2\ns_lshl_b32 s{sT1}, s{sT1}, 2\ns_add_u32 s{sT0}, s{sT0}, s{sT1}")
    A(f"s_and_b32 s{sT1}, s{sSLOT}, 3\ns_add_u32 s{sM2}, s{sT0}, s{sT1}\ns_lshr_b32 s{sN2}, s{sSLOT}, 2")
    A("s_waitcnt lgkmcnt(0)")
    A(f"s_load_dword s{sEP}, s[36:37], 0")
    srd(A, sX, 4, 1835008)
    srd(A, sWS, 36, WS_SPAN)
    A("s_cmp_ge_u32 s2, 256\ns_cbranch_scc1 L_ssm\ns_cmp_ge_u32 s2, 224\ns_cbranch_scc1 L_aux")
    names = {}
    names["gemm"] = gemm_role(A, opt)
    names["ssm"] = ssm_role(A, opt)
    aux_role(A, opt)
    A.label("L_end")
    A("s_endpgm")
    body, nn = hazard_pass(A.lines)
    ref = open(f"cdna_kernels/{NAME}.s.ref").read().split("\n")
    head = [l for l in ref if l.startswith(";") and "@launch" not in l]
    out = head + [f"; @launch grid=({NWG},1,1) block=(256,1,1) lds=81920",
                  '.amdgcn_target "amdgcn-amd-amdhsa--gfx950"', ".text", f".globl {NAME}_kernel", ".p2align 8",
                  f".type {NAME}_kernel,@function", f"{NAME}_kernel:"]
    out += [("    " + l if not l.endswith(":") else l) for l in body]
    out += ['.section .rodata,"a"', ".p2align 6", f".amdhsa_kernel {NAME}_kernel",
            "  .amdhsa_next_free_vgpr 256", "  .amdhsa_next_free_sgpr 102", "  .amdhsa_accum_offset 256",
            "  .amdhsa_group_segment_fixed_size 0", "  .amdhsa_kernarg_size 136", "  .amdhsa_user_sgpr_count 2",
            "  .amdhsa_user_sgpr_kernarg_segment_ptr 1", "  .amdhsa_system_sgpr_workgroup_id_x 1", ".end_amdhsa_kernel"]
    return "\n".join(out) + "\n", names, nn

if __name__ == "__main__":
    opt = Opt()
    path = sys.argv[1] if len(sys.argv) > 1 else f"cdna_kernels/{NAME}.s"
    for kv in sys.argv[2:]:
        k, val = kv.split("=")
        setattr(opt, k, int(val) if val.isdigit() else val)
    txt, names, nn = build(opt)
    open(path, "w").write(txt)
    import json
    open(path + ".names.json", "w").write(json.dumps(names))
    print("wrote", path, "lines", txt.count("\n"), "nops inserted", nn)
```

```python
import sys
from asmlib import *

NAME = "gated_mix__ssm_conv_s4__swiglu_ffn__prompt"
WS_GATE, WS_F1, WS_F3, WS_F2, WS_FK = 0x8000, 0x10000, 0x18000, 0x20000, 0x30000
WS_PROF = 0x40000
WS_UT, WS_AT, WS_H, WS_KP = 0x100000, 0x300000, 0x500000, 0xC00000
WS_SPAN = 0x1000000
NWG = 480
SPIN_MAX = 20000
LOG2E = 0x3fb8aa3b
NLOG2E = 0xbfb8aa3b
KBUF = 49152

class Opt:
    prof = 0
    lightprof = 1
    echo = ''
    rot1 = 1
    rot2 = 1
    npre = 6
    pdh = 6
    flagstep = 2
    pollb = 11
    polly = 22
    gprio = 1
    kprio = 2
    cprio = 0
    epk = 0
    pf = 3
    nossm = 0
    stop = 0
    slp = 8
    fine = 0
    gdelay = 1
    kprio2 = -1
    vfirst = 0

sX, sW, sWd, sWS, sO, sH = 40, 44, 48, 52, 56, 68
sWAVE, sM, sJ, sEP, sM2, sN2, sXC, sSLOT = 60, 61, 62, 63, 64, 65, 66, 67
sT0, sT1, sT2, sT3 = 72, 73, 74, 75
sK0 = 76
sXo, sWo, sDo, sHo, sLB = 78, 79, 80, 81, 82
sXb, sWb, sHst = 83, 84, 85
sSPIN, sLine, sC8K = 86, 87, 39
sEP2 = 88
sP, sDT, sDS, sCA, sCB, sUN, sFKV = 92, 93, 94, 95, 96, 97, 98
sOut = 99
sU0, sU1 = 98, 3
sDB = 94

def srd(A, d, lo, size):
    A(f"s_mov_b32 s{d}, s{lo}\ns_mov_b32 s{d+1}, s{lo+1}\ns_mov_b32 s{d+2}, {size}\ns_mov_b32 s{d+3}, 0x20000")

class Prof:
    def __init__(self, A, on, vreg, echo=''):
        self.A, self.on, self.vreg, self.n = A, on, vreg, 0
        self.names = []; self.echo = echo
    def stamp(self, name):
        A = self.A
        if self.echo and name == self.echo:
            A("s_memrealtime s[90:91]"); A.wait_all(vm=False); A("s_sub_u32 s3, s90, s38")
        if self.echo and name == "end":
            A("s_memrealtime s[90:91]\ns_waitcnt lgkmcnt(0)\ns_mov_b32 s38, s90\ns_min_u32 s3, s3, 20000")
            A.label("L_echo")
            A("s_memrealtime s[90:91]\ns_waitcnt lgkmcnt(0)\ns_sub_u32 s90, s90, s38\ns_cmp_lt_u32 s90, s3\ns_cbranch_scc1 L_echo")
        if not self.on: return
        if self.n == 0:
            A(f"v_writelane_b32 v{self.vreg}, s38, 0")
            self.names.append("start"); self.n += 1
        A("s_memrealtime s[90:91]")
        A("s_memtime s[100:101]")
        A.wait_all(vm=False)
        A(f"v_writelane_b32 v{self.vreg}, s100, {32 + self.n}")
        A(f"v_writelane_b32 v{self.vreg}, s90, {self.n}")
        assert self.n < 32
        self.names.append(name); self.n += 1
    def flush(self, tmp):
        if not self.on: return
        A = self.A
        A(f"s_lshl_b32 s90, s2, 2\ns_add_u32 s90, s90, s{sWAVE}\ns_lshl_b32 s90, s90, 8\ns_add_u32 s90, s90, {WS_PROF}")
        A(f"v_lshlrev_b32 v{tmp}, 2, v0")
        A(f"buffer_store_dword v{self.vreg}, v{tmp}, s[{sWS}:{sWS+3}], s90 offen")

def epoch_finish(A):
    A(f"s_mul_i32 s{sEP}, s{sEP}, 0x9E3779B1\ns_add_u32 s{sEP}, s{sEP}, 0x7F4A7C15")
    A(f"s_mov_b32 s{sEP2}, s{sEP}\ns_mov_b32 s{sEP2+1}, s{sEP}")

def after_kernarg(A):
    A("s_waitcnt lgkmcnt(0)")
    A(f"s_load_dword s{sEP}, s[36:37], 0")

_uid = [0]
def uid(p):
    _uid[0] += 1; return f"L_{p}{_uid[0]}"

def poll_issue(A, soff, n, extra=None):
    A(f"s_load_dwordx16 s[4:19], s[36:37], s{soff} glc")
    if n > 16:
        A(f"s_add_u32 s{sT3}, s{soff}, 64")
        A(f"s_load_dwordx16 s[20:35], s[36:37], s{sT3} glc" if n > 18 else f"s_load_dwordx2 s[20:21], s[36:37], s{sT3} glc")
    if extra is not None:
        A(f"s_add_u32 s{sT3}, s{soff}, {extra}")
        A(f"s_load_dword s{sFKV}, s[36:37], s{sT3} glc")

def poll_check(A, soff, n, extra=None, slp=2):
    top, bad, ok = uid("pt"), uid("pb"), uid("po")
    A(f"s_mov_b32 s{sSPIN}, 0")
    A.label(top)
    A.wait_all(vm=False)
    for i in range(0, n, 2):
        A(f"s_cmp_eq_u64 s[{4+i}:{5+i}], s[{sEP2}:{sEP2+1}]")
        A(f"s_cbranch_scc0 {bad}")
    if extra is not None:
        A(f"s_cmp_eq_u32 s{sFKV}, s{sEP}\ns_cbranch_scc0 {bad}")
    A(f"s_branch {ok}")
    A.label(bad)
    A(f"s_add_u32 s{sSPIN}, s{sSPIN}, 1\ns_cmp_ge_u32 s{sSPIN}, {SPIN_MAX}\ns_cbranch_scc1 {ok}")
    A(f"s_sleep {slp}")
    poll_issue(A, soff, n, extra)
    A(f"s_branch {top}")
    A.label(ok)

def flag_lanes(A, vd, sbase, nl):
    A(f"s_cmp_eq_u32 s{sWAVE}, 0\ns_cselect_b32 s{sT3}, {nl}, 0")
    A(f"v_add_u32 v{vd}, s{sbase}, v{vd}\nv_cmp_gt_u32 vcc, s{sT3}, v0")
    A(f"v_cndmask_b32 v{vd}, 2.0, v{vd}, vcc")

def wrap_add(A, reg, step, limit):
    A(f"s_add_u32 s{sT0}, s{reg}, {step}\ns_sub_u32 s{sT1}, s{sT0}, {limit}\ns_cselect_b32 s{reg}, s{sT0}, s{sT1}")

def cmul(A, d, a, b, t):
    A(f"v_mul_f32 v{t}, v{a+1}, v{b+1}\nv_mul_f32 v{t+1}, v{a+1}, v{b}")
    A(f"v_fma_f32 v{d+1}, v{a}, v{b+1}, v{t+1}\nv_fma_f32 v{d}, v{a}, v{b}, -v{t}")

def hmul(A, dr, di, sr, si, F, conj=False):
    n = "neg_lo:[1,0,0] neg_hi:[1,0,0]"
    A(f"v_pk_mul_f16 v{dr}, v{sr}, v{F} op_sel_hi:[1,0]")
    A(f"v_pk_mul_f16 v{di}, v{si}, v{F} op_sel_hi:[1,0]")
    A(f"v_pk_fma_f16 v{dr}, v{si}, v{F}, v{dr} op_sel:[0,1,0] op_sel_hi:[1,1,1] {'' if conj else n}")
    A(f"v_pk_fma_f16 v{di}, v{sr}, v{F}, v{di} op_sel:[0,1,0] op_sel_hi:[1,1,1] {n if conj else ''}")

def csq(A, d, a, t):
    A(f"v_mul_f32 v{t}, v{a+1}, v{a+1}\nv_add_f32 v{t+1}, v{a}, v{a}")
    A(f"v_fma_f32 v{d}, v{a}, v{a}, -v{t}\nv_mul_f32 v{d+1}, v{t+1}, v{a+1}")

def gemm_role(A, opt):
    vWo, vXo, vXr = 2, 6, 10
    vWr = 224
    vHst, vFlag, vEp = 14, 15, 228
    vPROF, vDo = 229, 230
    FB, ACC, XF = 16, 48, 112
    TMP = 232
    vFK = 255
    P = Prof(A, opt.prof, vPROF, opt.echo)
    A.label("L_gemm")
    if opt.gprio: A(f"s_setprio {opt.gprio}")
    A(f"s_and_b32 s{sT0}, s{sXC}, 3\ns_lshl_b32 s{sT0}, s{sT0}, 2\ns_and_b32 s{sT1}, s{sSLOT}, 3\ns_add_u32 s{sM}, s{sT0}, s{sT1}")
    A(f"s_lshr_b32 s{sT0}, s{sXC}, 2\ns_mul_i32 s{sT0}, s{sT0}, 7\ns_add_u32 s{sJ}, s{sT0}, s{sN2}")
    if opt.rot1:
        A(f"s_and_b32 s{sT0}, s{sSLOT}, 3\ns_lshl_b32 s{sT0}, s{sT0}, 1\ns_add_u32 s{sT0}, s{sT0}, s{sN2}")
        A(f"s_sub_u32 s{sT1}, s{sT0}, 7\ns_cselect_b32 s{sT2}, s{sT0}, s{sT1}")
    else:
        A(f"s_mov_b32 s{sT2}, 0")
    A(f"s_lshl_b32 s{sXo}, s{sT2}, 7\ns_mul_i32 s{sWo}, s{sT2}, 229376")
    A(f"s_lshl_b32 s{sT0}, s{sM}, 2\ns_add_u32 s{sT0}, s{sT0}, s{sWAVE}\ns_mul_i32 s{sXb}, s{sT0}, 28672")
    A(f"s_and_b32 s{sT1}, s{sWAVE}, 1\ns_mul_i32 s{sT1}, s{sT1}, 114688\ns_lshl_b32 s{sWb}, s{sJ}, 8\ns_add_u32 s{sWb}, s{sWb}, s{sT1}")
    A("v_lshrrev_b32 v1, 3, v0")
    A("v_and_b32 v232, 7, v0")
    A("v_lshrrev_b32 v233, 1, v1")
    A("v_and_b32 v234, 1, v233\nv_lshlrev_b32 v234, 2, v234\nv_xor_b32 v234, v234, v232\nv_lshlrev_b32 v234, 4, v234")
    A(f"v_mul_u32_u24 v{vWo}, 3584, v1\nv_add_u32 v{vWo}, v{vWo}, v234")
    for q in range(1, 4): A(f"v_add_u32 v{vWo+q}, {q*27648}, v{vWo}")
    A(f"v_xor_b32 v235, v233, v232\nv_lshlrev_b32 v235, 4, v235")
    A(f"v_mul_u32_u24 v236, 896, v1")
    A(f"v_add_u32 v{vXo}, v236, v235\nv_xor_b32 v235, 64, v235\nv_add_u32 v237, v236, v235")
    A(f"v_add_u32 v{vXo+1}, 6144, v237\nv_add_u32 v{vXo+2}, 12288, v{vXo}\nv_add_u32 v{vXo+3}, 18432, v237")
    A(f"v_add_u32 v{vDo}, v236, v234\nv_add_u32 v{vDo+1}, 6144, v{vDo}")
    after_kernarg(A)
    srd(A, sX, 4, 1835008)
    A(f"s_cmp_lt_u32 s{sWAVE}, 2\ns_cselect_b32 s{sW}, s24, s26\ns_cselect_b32 s{sW+1}, s25, s27\ns_mov_b32 s{sW+2}, 1605632\ns_mov_b32 s{sW+3}, 0x20000")

    units = []
    for c in range(7): units += [("X", c), ("W", c)]
    for c in range(7): units += [("V", c)]
    tok, dtok = {}, {}
    def issue_unit(u):
        slot = u % 5
        fns = []
        if u < 21:
            kind, c = units[u]
            def pre():
                A(f"s_add_u32 m0, s{sLB}, {slot*16384}")
                if kind == "X":
                    A(f"s_add_u32 s{sT2}, s{sXb}, s{sXo}")
                    wrap_add(A, sXo, 128, 896)
                else:
                    A(f"s_add_u32 s{sT2}, s{sWb}, s{sWo}")
                    wrap_add(A, sWo, 229376, 1605632)
                    if u == 13: A(f"s_add_u32 s{sWb}, s{sWb}, 128")
            fns.append(pre)
            for q in range(4):
                def f(q=q):
                    if kind == "X": t = A.vmop(f"buffer_load_dwordx4 v{vXo+q}, s[{sX}:{sX+3}], s{sT2} offen offset:{q*1024} lds")
                    else: t = A.vmop(f"buffer_load_dwordx4 v{vWo+q}, s[{sW}:{sW+3}], s{sT2} offen offset:{q*1024} lds")
                    tok[u] = t
                fns.append(f)
        else:
            for st in (2 * (u - 21), 2 * (u - 21) + 1):
                fns += issue_wd(st)
        return fns
    def issue_wd(st):
        slot = (21 + st // 2) % 5
        def pre():
            A(f"s_add_u32 m0, s{sLB}, {slot*16384 + (st & 1)*2048}")
            A(f"s_mov_b32 s{sT2}, s{sDo}")
            wrap_add(A, sDo, 114688, 1605632)
            if st == 13: A(f"s_add_u32 s{sDo}, s{sDo}, {4*14336}")
        def f(img):
            dtok[st] = A.vmop(f"buffer_load_dwordx4 v{vDo+img}, s[{sWd}:{sWd+3}], s{sT2} offen offset:{img*1024} lds")
        return [pre, lambda: f(0), lambda: f(1)]
    def run_unit(u):
        for f in issue_unit(u): f()
    if not opt.gdelay: run_unit(0); run_unit(1)
    srd(A, sWS, 36, WS_SPAN); srd(A, sWd, 28, 1605632); srd(A, sO, 32, 1835008)
    A("v_and_b32 v232, 31, v0\nv_lshrrev_b32 v233, 5, v0")
    A("v_bfe_u32 v234, v0, 1, 3\nv_xor_b32 v234, v234, v233\nv_lshlrev_b32 v234, 4, v234")
    A(f"v_lshl_add_u32 v{vXr}, v232, 7, v234\nv_add_u32 v{vXr}, s{sLB}, v{vXr}")
    for ks in range(1, 4): A(f"v_xor_b32 v{vXr+ks}, {ks*32}, v{vXr}")
    A("v_bfe_u32 v234, v0, 2, 2")
    A("v_lshlrev_b32 v235, 10, v233\nv_lshl_add_u32 v235, v234, 7, v235")
    A("v_bfe_u32 v236, v0, 3, 1\nv_lshl_add_u32 v235, v236, 6, v235")
    A("v_bfe_u32 v236, v0, 4, 1\nv_and_b32 v237, 1, v0\nv_bfe_u32 v238, v0, 1, 1")
    A(f"v_lshl_add_u32 v239, v238, 3, v235")
    A(f"v_lshl_add_u32 v{vWr}, v236, 5, v239\nv_lshl_add_u32 v{vWr}, v237, 4, v{vWr}")
    A(f"v_xor_b32 v{vWr+1}, 64, v{vWr}\nv_add_u32 v{vWr+2}, 0x10000, v{vWr}\nv_add_u32 v{vWr+3}, 0x10000, v{vWr+1}")
    A(f"v_lshl_add_u32 v1, v237, 5, v239\nv_lshl_add_u32 v1, v236, 4, v1\nv_add_u32 v1, s{sLB}, v1")
    A(f"s_and_b32 s{sT0}, s{sWAVE}, 1\ns_lshl_b32 s{sT0}, s{sT0}, 6\nv_xor_b32 v1, s{sT0}, v1")
    A(f"v_lshlrev_b32 v{vHst}, 4, v0")
    A(f"s_lshl_b32 s{sT0}, s{sM}, 1\ns_lshr_b32 s{sT1}, s{sWAVE}, 1\ns_add_u32 s{sT0}, s{sT0}, s{sT1}\ns_mul_i32 s{sHst}, s{sT0}, 229376")
    A(f"s_and_b32 s{sT1}, s{sWAVE}, 1\ns_lshl_b32 s{sT1}, s{sT1}, 10\ns_add_u32 s{sHst}, s{sHst}, s{sT1}")
    A(f"s_lshl_b32 s{sT1}, s{sJ}, 14\ns_add_u32 s{sHst}, s{sHst}, s{sT1}\ns_add_u32 s{sHst}, s{sHst}, {WS_H}")
    A(f"v_lshrrev_b32 v232, 1, v0\nv_lshlrev_b32 v232, 12, v232\nv_and_b32 v233, 1, v0\nv_lshl_add_u32 v{vFlag}, v233, 7, v232")
    A(f"s_lshl_b32 s{sT0}, s{sM}, 8\ns_lshl_b32 s{sT1}, s{sJ}, 2\ns_add_u32 s{sT0}, s{sT0}, s{sT1}\ns_add_u32 s{sT0}, s{sT0}, {WS_F2}")
    flag_lanes(A, vFlag, sT0, 16)
    A(f"s_lshl_b32 s{sT0}, s{sN2}, 5\ns_add_u32 s{sT0}, s{sT0}, s{sM2}\ns_lshl_b32 s{sLine}, s{sT0}, 7\ns_mov_b32 s{sC8K}, 0x8000")
    if opt.rot2: A(f"s_lshl_b32 s{sT0}, s{sN2}, 4\ns_add_u32 s{sT0}, s{sT0}, s{sWAVE}")
    else: A(f"s_mov_b32 s{sT0}, s{sWAVE}")
    A(f"s_mul_i32 s{sDo}, s{sT0}, 14336\ns_lshl_b32 s{sT1}, s{sN2}, 7\ns_add_u32 s{sDo}, s{sDo}, s{sT1}\ns_lshl_b32 s{sHo}, s{sT0}, 11")
    A(f"s_mul_i32 s{sT0}, s{sM2}, 229376\ns_add_u32 s{sT0}, s{sT0}, {WS_H}\ns_add_u32 s{sH}, s36, s{sT0}\ns_addc_u32 s{sH+1}, s37, 0\ns_mov_b32 s{sH+2}, 229376\ns_mov_b32 s{sH+3}, 0x20000")
    A(f"s_mov_b32 s{sK0}, {NLOG2E}\ns_mov_b32 s{sK0+1}, {NLOG2E}")
    A(f"s_lshl_b32 s{sT0}, s{sM2}, 1\ns_lshr_b32 s{sT1}, s{sWAVE}, 1\ns_add_u32 s{sT0}, s{sT0}, s{sT1}\ns_mul_i32 s{sOut}, s{sT0}, 28672")
    A(f"s_lshl_b32 s{sT0}, s{sN2}, 1\ns_and_b32 s{sT1}, s{sWAVE}, 1\ns_add_u32 s{sT0}, s{sT0}, s{sT1}\ns_lshl_b32 s{sT0}, s{sT0}, 6\ns_add_u32 s{sOut}, s{sOut}, s{sT0}")
    if opt.gdelay: run_unit(0); run_unit(1)
    A("s_waitcnt lgkmcnt(0)")
    epoch_finish(A)
    A(f"v_mov_b32 v{vEp}, s{sEP}")
    P.stamp("setup")
    for u in (2, 3, 4): run_unit(u)
    pend = []
    st_tok = {}
    def drain(n):
        for _ in range(n):
            if pend: pend.pop(0)()
    def drain_one_dma():
        v0 = A.vm
        while pend and A.vm == v0: drain(1)

    def wu(st): return 2 * st + 1 if st < 7 else 7 + st
    ftok, xtok = {}, {}
    def rd_frag(st, i):
        ks, q = i // 4, i % 4
        mat, ft = q >> 1, q & 1
        slot = wu(st) % 5
        base = vWr + ft + (2 if slot == 4 else 0)
        off = (0 if slot == 4 else slot * 16384) + mat * 8192 + ks * 2048
        b = FB + 4 * (i % 8)
        A.lgop(f"ds_read_b64_tr_b16 v[{b}:{b+1}], v{base} offset:{off}")
        ftok[(st, i)] = A.lgop(f"ds_read_b64_tr_b16 v[{b+2}:{b+3}], v{base} offset:{off+512}")
    def rd_x(c, ks):
        slot = (2 * c) % 5
        r = XF + 16 * c + 4 * ks
        if slot == 4:
            A(f"v_add_u32 v{TMP+ks}, 0x10000, v{vXr+ks}")
            xtok[(c, ks)] = A.lgop(f"ds_read_b128 v[{r}:{r+3}], v{TMP+ks}")
        else:
            xtok[(c, ks)] = A.lgop(f"ds_read_b128 v[{r}:{r+3}], v{vXr+ks} offset:{slot*16384}")
    issued = {0, 1, 2, 3, 4}
    def free_units(upto, hold=()):
        for u in range(min(upto + 5, 25) + 1):
            if u not in issued and u not in hold:
                pend.extend(issue_unit(u)); issued.add(u)
    def barrier(st):
        drain(99)
        need = tok[wu(st)] if st < 14 else None
        if st < 7: need = max(need, tok[2 * st])
        if st == 9: need = max(need, st_tok["A"])
        A.wait_all(vm=False)
        if need is not None: A.wait(vm=need)
        A("s_barrier")
        if not opt.lightprof or st in (0, 1, 7, 8, 14) or opt.echo: P.stamp(f"B{st}")
        if st == 9: A.vmop(f"buffer_store_dword v{vEp}, v{vFlag}, s[{sWS}:{sWS+3}], 0 offen sc1")
        if st >= 1: free_units(wu(st - 1))

    def epilogue1(hf, extra=None):
        extra = extra or {}
        for ft in range(2):
            G, U = ACC + 16 * ft, ACC + 32 + 16 * ft
            for blk in range(2):
                t = TMP; o = TMP + 16 + 4 * blk
                bi = 2 * ft + blk
                def pt(ph):
                    if (bi, ph) in extra: extra[(bi, ph)]()
                if opt.epk:
                    for p in range(4): A(f"v_pk_mul_f32 v[{t+2*p}:{t+2*p+1}], v[{G+8*blk+2*p}:{G+8*blk+2*p+1}], s[{sK0}:{sK0+1}]")
                else:
                    for p in range(8): A(f"v_mul_f32 v{t+p}, s{sK0}, v{G+8*blk+p}")
                pt(0)
                for p in range(4): A(f"v_exp_f32 v{t+p}, v{t+p}")
                pt(1)
                for p in range(4, 8): A(f"v_exp_f32 v{t+p}, v{t+p}")
                pt(2)
                if opt.epk:
                    for p in range(4): A(f"v_pk_mul_f32 v[{t+8+2*p}:{t+9+2*p}], v[{G+8*blk+2*p}:{G+8*blk+2*p+1}], v[{U+8*blk+2*p}:{U+8*blk+2*p+1}]")
                    for p in range(4): A(f"v_pk_add_f32 v[{t+2*p}:{t+2*p+1}], v[{t+2*p}:{t+2*p+1}], 1.0 op_sel_hi:[1,0]")
                else:
                    for p in range(8): A(f"v_mul_f32 v{t+8+p}, v{G+8*blk+p}, v{U+8*blk+p}")
                    for p in range(8): A(f"v_add_f32 v{t+p}, 1.0, v{t+p}")
                pt(3)
                for p in range(4): A(f"v_rcp_f32 v{t+p}, v{t+p}")
                pt(4)
                for p in range(4, 8): A(f"v_rcp_f32 v{t+p}, v{t+p}")
                pt(5)
                if opt.epk:
                    for p in range(4): A(f"v_pk_mul_f32 v[{t+8+2*p}:{t+9+2*p}], v[{t+8+2*p}:{t+9+2*p}], v[{t+2*p}:{t+2*p+1}]")
                else:
                    for p in range(8): A(f"v_mul_f32 v{t+8+p}, v{t+8+p}, v{t+p}")
                for p in range(4): A(f"v_cvt_pk_bf16_f32 v{o+p}, v{t+8+2*p}, v{t+9+2*p}")
                if blk == 0: A(f"s_add_u32 s{sT2}, s{sHst}, {hf*8192 + ft*4096}")
                st_tok["AB"[hf]] = A.vmop(f"buffer_store_dwordx4 v[{o}:{o+3}], v{vHst}, s[{sWS}:{sWS+3}], s{sT2} offen offset:{blk*2048} sc1")
                pt(6)

    barrier(0)
    for ks in range(4): rd_x(0, ks)
    for i in range(6): rd_frag(0, i)
    for st in range(14):
        c = st % 7
        for i in range(16):
            ks, q = i // 4, i % 4
            need = ftok[(st, i)]
            if st < 7: need = max(need, xtok[(c, ks)])
            A.wait(lg=need)
            b = FB + 4 * (i % 8); x = XF + 16 * c + 4 * ks; a = ACC + 16 * q
            cin = "0" if (c == 0 and ks == 0) else f"v[{a}:{a+15}]"
            A(f"v_mfma_f32_32x32x16_bf16 v[{a}:{a+15}], v[{b}:{b+3}], v[{x}:{x+3}], {cin}")
            if i <= 9: rd_frag(st, i + 6)
            if i == 6 and st < 7: free_units(2 * st)
            if i == 12:
                barrier(st + 1)
                if st < 13:
                    if st + 1 < 7: rd_x(st + 1, 0)
                    rd_frag(st + 1, 0); rd_frag(st + 1, 1)
                else:
                    A(f"s_add_u32 s{sXo}, s{sLine}, {WS_F2}")
                    poll_issue(A, sXo, 14)
            elif i == 13 and st < 13:
                rd_frag(st + 1, 2); rd_frag(st + 1, 3)
                if st + 1 < 7: rd_x(st + 1, 1)
            elif i == 14 and st < 13:
                rd_frag(st + 1, 4)
                if st + 1 < 7: rd_x(st + 1, 2)
            elif i == 15 and st < 13:
                rd_frag(st + 1, 5)
                if st + 1 < 7: rd_x(st + 1, 3)
            if (st < 7 and i % 2 == 1) or (st >= 7 and i % 4 == 1) or (st in (6, 13) and i >= 13):
                drain_one_dma()
                if st == 6 and i == 15: drain(99)
        if st == 6: epilogue1(0)
    drain(99)

    HR, HD = XF, 14
    vHo, vDr = 2, 4
    AC2 = ACC
    htok = {}
    hnext = [0]
    def issue_h():
        st = hnext[0]; hnext[0] += 1
        r = HR + 8 * (st % HD)
        A.vmop(f"buffer_load_dwordx4 v[{r}:{r+3}], v{vHo}, s[{sH}:{sH+3}], s{sHo} offen sc1")
        htok[st] = A.vmop(f"buffer_load_dwordx4 v[{r+4}:{r+7}], v{vHo+1}, s[{sH}:{sH+3}], s{sHo} offen sc1")
        wrap_add(A, sHo, 16384, 229376)
        if st == 13: A(f"s_add_u32 s{sHo}, s{sHo}, 8192")
    def chk_a():
        A(f"s_lshr_b32 s{sT0}, s{sWAVE}, 1\ns_lshl_b32 s{sT0}, s{sT0}, 10")
        A(f"v_or_b32 v{vHo}, s{sT0}, v{vHst}\nv_xor_b32 v{vHo+1}, 0x400, v{vHo}")
        A(f"v_mov_b32 v{vDr}, v1\nv_xor_b32 v{vDr+1}, 64, v1\nv_add_u32 v{vDr+2}, 0x10000, v{vDr}\nv_add_u32 v{vDr+3}, 0x10000, v{vDr+1}")
        poll_check(A, sXo, 14)
        P.stamp("flagA")
        issue_h(); issue_h()
    extra = {(1, 2): chk_a}
    pts = [(1, 4), (1, 6), (2, 1), (2, 3), (2, 5), (3, 0), (3, 2), (3, 4), (2, 0), (2, 2), (2, 4), (3, 1)]
    for p_ in pts[:max(opt.npre - 2, 0)]: extra[p_] = issue_h
    epilogue1(1, extra)
    P.stamp("epiB")
    wtok = {}
    def rd_wd(st):
        if st >= 28 or (st, 0) in wtok: return
        A.wait(vm=dtok[st])
        slot = (21 + st // 2) % 5
        off = (0 if slot == 4 else slot * 16384) + (st & 1) * 2048
        for dt in range(2):
            base = vDr + dt + (2 if slot == 4 else 0)
            b = FB + 8 * (st % 4) + 4 * dt
            A.lgop(f"ds_read_b64_tr_b16 v[{b}:{b+1}], v{base} offset:{off}")
            wtok[(st, dt)] = A.lgop(f"ds_read_b64_tr_b16 v[{b+2}:{b+3}], v{base} offset:{off+512}")
    rd_wd(0)
    ATS = (21 + 9) % 5
    RS = [(21 + 10) % 5, (21 + 11) % 5, (21 + 12) % 5]
    assert opt.polly >= 20 and 4 not in RS + [ATS]
    vG = TMP + 2
    skipy = opt.nossm or opt.stop
    for st in range(28):
        if st == opt.flagstep:
            A.wait(vm=st_tok["B"])
            A("s_barrier")
            A.vmop(f"buffer_store_dword v{vEp}, v{vFlag}, s[{sWS}:{sWS+3}], s{sC8K} offen sc1")
        if st == opt.pollb:
            poll_check(A, sXo, 14)
            P.stamp("flagB")
        if st == opt.polly:
            if not skipy: poll_check(A, sXo, 32)
            P.stamp("flagY")
            A(f"s_lshl_b32 s{sT0}, s{sN2}, 2\ns_add_u32 s{sT0}, s{sT0}, s{sWAVE}\ns_lshl_b32 s{sT0}, s{sT0}, 16\ns_lshl_b32 s{sT1}, s{sM2}, 7\ns_add_u32 s{sT0}, s{sT0}, s{sT1}\ns_add_u32 s{sT2}, s{sT0}, {WS_AT}")
            A(f"s_add_u32 m0, s{sLB}, {ATS*16384}")
            A.vmop(f"buffer_load_dwordx4 v{TMP}, s[{sWS}:{sWS+3}], s{sT2} offen sc1 lds")
            A.vmop(f"buffer_load_dwordx4 v{TMP+1}, s[{sWS}:{sWS+3}], s{sT2} offen offset:1024 sc1 lds")
            A.vmop(f"buffer_load_dwordx2 v[{vG}:{vG+1}], v{TMP+4}, s[{sWS}:{sWS+3}], s{sWo} offen sc1")
        lim = min(st + opt.pdh, 27, st + HD - 1)
        if st < opt.pollb: lim = min(lim, 13)
        for _ in range(2):
            if hnext[0] <= lim: issue_h()
        A.wait(vm=htok[st])
        rd_wd(st + 1)
        if st + 2 in (opt.pollb, opt.polly):
            rd_wd(st + 2)
            A.wait_all(vm=False)
            if st + 2 == opt.pollb:
                A(f"s_add_u32 s{sXo}, s{sXo}, 0x8000"); poll_issue(A, sXo, 14)
            elif not skipy:
                A(f"s_add_u32 s{sXo}, s{sLine}, {WS_F3}"); poll_issue(A, sXo, 32)
        r = HR + 8 * (st % HD)
        for dt in range(2):
            A.wait(lg=wtok[(st, dt)])
            for tt in range(2):
                a = AC2 + 16 * (dt + 2 * tt); b = FB + 8 * (st % 4) + 4 * dt
                cin = "0" if st == 0 else f"v[{a}:{a+15}]"
                A(f"v_mfma_f32_32x32x16_bf16 v[{a}:{a+15}], v[{b}:{b+3}], v[{r+4*tt}:{r+4*tt+3}], {cin}")
        if st + 10 < 28:
            for f in issue_wd(st + 10): f()
        if st == 18:
            A(f"v_lshrrev_b32 v{TMP}, 3, v0\nv_lshlrev_b32 v{TMP}, 12, v{TMP}\nv_and_b32 v{TMP+1}, 7, v0\nv_lshl_add_u32 v{TMP}, v{TMP+1}, 4, v{TMP}")
            A(f"v_add_u32 v{TMP+1}, {32768-1024}, v{TMP}")
            A(f"v_and_b32 v{TMP+4}, 31, v0\nv_mul_u32_u24 v{TMP+10}, 896, v{TMP+4}\nv_lshlrev_b32 v{TMP+4}, 3, v{TMP+4}")
            A(f"s_lshl_b32 s{sT0}, s{sM2}, 1\ns_lshr_b32 s{sT1}, s{sWAVE}, 1\ns_add_u32 s{sT0}, s{sT0}, s{sT1}\ns_lshl_b32 s{sWo}, s{sT0}, 8\ns_add_u32 s{sWo}, s{sWo}, {WS_GATE}")
            A(f"v_add_u32 v{TMP+5}, s{sLB}, v{vHst}")
            for a in range(1, 4): A(f"v_xor_b32 v{TMP+5+a}, {a << 12}, v{TMP+5}")
        if st == 19:
            A(f"v_lshrrev_b32 v{TMP+11}, 5, v0\nv_lshl_add_u32 v{TMP+10}, v{TMP+11}, 5, v{TMP+10}")
            A(f"v_lshlrev_b32 v{TMP+9}, 12, v{TMP+11}\nv_bfe_u32 v{TMP+11}, v0, 2, 2\nv_lshl_add_u32 v{TMP+9}, v{TMP+11}, 7, v{TMP+9}")
            A(f"v_bfe_u32 v{TMP+11}, v0, 4, 1\nv_lshl_add_u32 v{TMP+9}, v{TMP+11}, 5, v{TMP+9}\nv_and_b32 v{TMP+11}, 3, v0\nv_lshl_add_u32 v{TMP+9}, v{TMP+11}, 3, v{TMP+9}")
            A(f"s_and_b32 s{sT0}, s{sWAVE}, 1\ns_lshl_b32 s{sT0}, s{sT0}, 13\ns_lshr_b32 s{sT1}, s{sWAVE}, 1\ns_lshl_b32 s{sT1}, s{sT1}, 6\ns_add_u32 s{sT0}, s{sT0}, s{sT1}")
            A(f"v_add_u32 v{TMP+9}, s{sT0}, v{TMP+9}")
    P.stamp("g2loop")
    for a in (2, 1, 3):
        for k in range(4):
            r = AC2 + 16 * a + 4 * k
            A.lgop(f"ds_write_b128 v{TMP+5}, v[{r}:{r+3}] offset:{RS[a-1]*16384 + k*1024}")
    A.wait_all()
    A("s_barrier")
    PR = XF
    rt = []
    for a in range(1, 4):
        for k in range(4):
            r = PR + 16 * (a - 1) + 4 * k
            t = A.lgop(f"ds_read_b128 v[{r}:{r+3}], v{TMP+5+a} offset:{RS[a-1]*16384 + k*1024}")
        rt.append(t)
    top, ok = uid("gt"), uid("go")
    A(f"s_mov_b32 s{sSPIN}, 0")
    A.label(top)
    A(f"v_cmp_ne_u32 vcc, s{sEP}, v{vG+1}")
    A(f"s_cbranch_vccz {ok}")
    A(f"s_add_u32 s{sSPIN}, s{sSPIN}, 1\ns_cmp_ge_u32 s{sSPIN}, {SPIN_MAX}\ns_cbranch_scc1 {ok}")
    A(f"buffer_load_dwordx2 v[{vG}:{vG+1}], v{TMP+4}, s[{sWS}:{sWS+3}], s{sWo} offen sc1")
    A("s_waitcnt vmcnt(0)")
    A(f"s_branch {top}")
    A.label(ok)
    A.wait(lg=rt[0])
    AT = FB
    for e in range(4):
        at = A.lgop(f"ds_read_b64_tr_b16 v[{AT+2*e}:{AT+2*e+1}], v{TMP+9} offset:{ATS*16384 + e*512}")
    A(f"v_lshlrev_b32 v{TMP+12}, 16, v{vG}\nv_and_b32 v{TMP+14}, 0xffff0000, v{vG}")
    for a in range(3):
        if a: A.wait(lg=rt[a])
        for p in range(8):
            A(f"v_pk_add_f32 v[{AC2+2*p}:{AC2+2*p+1}], v[{AC2+2*p}:{AC2+2*p+1}], v[{PR+16*a+2*p}:{PR+16*a+2*p+1}]")
    A.wait(lg=at)
    for h in range(2):
        for p in range(4 * h, 4 * h + 4):
            A(f"v_lshlrev_b32 v{PR+2*p}, 16, v{AT+p}\nv_and_b32 v{PR+2*p+1}, 0xffff0000, v{AT+p}")
            A(f"v_pk_mul_f32 v[{AC2+2*p}:{AC2+2*p+1}], v[{AC2+2*p}:{AC2+2*p+1}], v[{TMP+14}:{TMP+15}] op_sel_hi:[1,0]")
        for p in range(4 * h, 4 * h + 4):
            A(f"v_pk_fma_f32 v[{AC2+2*p}:{AC2+2*p+1}], v[{PR+2*p}:{PR+2*p+1}], v[{TMP+12}:{TMP+13}], v[{AC2+2*p}:{AC2+2*p+1}] op_sel_hi:[1,0,1]")
        for p in range(4 * h, 4 * h + 4):
            A(f"v_cvt_pk_bf16_f32 v{AT+8+p}, v{AC2+2*p}, v{AC2+2*p+1}")
        A(f"buffer_store_dwordx4 v[{AT+8+4*h}:{AT+11+4*h}], v{TMP+10}, s[{sO}:{sO+3}], s{sOut} offen offset:{16*h}")
    P.stamp("end")
    P.flush(TMP)
    A("s_endpgm")
    return P.names

def ssm_role(A, opt):
    UBASE, KBASE, PIECE, PHOP, CP = 0, 33280, 0, 8192, 4160
    vPROF = 255
    P = Prof(A, opt.prof, vPROF)
    fine = P.stamp if opt.fine else (lambda n: None)
    sCH, sHW, sD, sUB, sKB, sF1, sRND = sM, sJ, sXo, sWo, sDo, sHo, sWb
    vF1, vF3, vEp, vL16 = 14, 15, 5, 4
    RAW, KA = 56, 64
    A.label("L_ssm")
    if opt.nossm: A("s_endpgm")
    if opt.kprio: A(f"s_setprio {opt.kprio}")
    A(f"s_sub_u32 s{sP}, s2, 256")
    A(f"s_lshl_b32 s{sT0}, s{sP}, 10\ns_lshl_b32 s{sT1}, s{sWAVE}, 8\ns_add_u32 s{sT0}, s{sT0}, s{sT1}\nv_lshl_add_u32 v62, v0, 2, s{sT0}")
    A(f"s_lshr_b32 s{sCH}, s{sWAVE}, 1\ns_and_b32 s{sHW}, s{sWAVE}, 1")
    A(f"s_lshl_b32 s{sD}, s{sP}, 1\ns_add_u32 s{sD}, s{sD}, s{sCH}")
    A("v_lshrrev_b32 v1, 3, v0\nv_mul_u32_u24 v2, 896, v1\nv_and_b32 v13, 7, v0\nv_lshl_add_u32 v2, v13, 4, v2\nv_add_u32 v3, 6144, v2")
    A(f"s_lshl_b32 s{sT0}, s{sM2}, 2\ns_add_u32 s{sT0}, s{sT0}, s{sWAVE}\ns_mul_i32 s{sT2}, s{sT0}, 14336\ns_lshl_b32 s{sT1}, s{sN2}, 7\ns_add_u32 s{sT2}, s{sT2}, s{sT1}")
    A(f"s_lshl_b32 s{sT0}, s{sWAVE}, 11\ns_add_u32 m0, s{sT0}, {PIECE}")
    SEL = 240
    A("v_and_b32 v16, 31, v0\nv_lshrrev_b32 v17, 5, v0\nv_lshlrev_b32 v17, 3, v17\nv_sub_u32 v16, v16, v17")
    A("v_and_b32 v17, 1, v0\nv_lshlrev_b32 v17, 4, v17\nv_mov_b32 v18, 0x3c00\nv_lshlrev_b32 v17, v17, v18\nv_ashrrev_i32 v16, 1, v16")
    for h in range(2):
        for i in range(4):
            A(f"v_cmp_eq_u32 vcc, {8*h + i}, v16\nv_cndmask_b32 v{SEL+4*h+i}, 0, v17, vcc")
    A("v_lshrrev_b32 v232, 4, v0\nv_bfe_u32 v233, v0, 2, 2\nv_and_b32 v234, 3, v0\nv_and_b32 v235, 15, v0")
    A(f"v_lshlrev_b32 v248, 10, v232\nv_lshl_add_u32 v248, v233, 7, v248\nv_lshl_add_u32 v248, v234, 3, v248")
    after_kernarg(A)
    for k in range(6):
        rtok = A.vmop(f"global_load_dword v{RAW+k}, v62, s[{6+2*k}:{7+2*k}]")
    A(f"s_lshl_b32 s{sT0}, s{sP}, 2")
    A(f"s_load_dword s{sDT}, s[18:19], s{sT0}\ns_load_dword s{sDS}, s[20:21], s{sT0}")
    srd(A, sX, 4, 1835008)
    A.vmop(f"buffer_load_dwordx4 v2, s[{sX}:{sX+3}], s{sT2} offen lds")
    ptok = A.vmop(f"buffer_load_dwordx4 v3, s[{sX}:{sX+3}], s{sT2} offen offset:1024 lds")
    srd(A, sWS, 36, WS_SPAN)
    A(f"s_lshl_b32 s{sT0}, s{sWAVE}, 5\ns_add_u32 s{sT0}, s{sT0}, {PIECE}\nv_add_u32 v248, s{sT0}, v248")
    A(f"s_add_u32 s{sT0}, s{sLB}, {PHOP}")
    A(f"v_mul_u32_u24 v249, 144, v235\nv_lshl_add_u32 v249, v232, 4, v249\nv_add_u32 v249, s{sT0}, v249")
    A(f"v_mul_u32_u24 v250, 144, v1\nv_lshl_add_u32 v250, v13, 4, v250\nv_add_u32 v250, s{sT0}, v250")
    A("v_lshlrev_b32 v251, 12, v1\nv_lshl_add_u32 v251, v13, 4, v251")
    A(f"s_lshl_b32 s{sT0}, s{sN2}, 2\ns_add_u32 s{sT0}, s{sT0}, s{sWAVE}\ns_lshl_b32 s{sT0}, s{sT0}, 16\ns_lshl_b32 s{sT1}, s{sM2}, 7\ns_add_u32 s{sT0}, s{sT0}, s{sT1}\ns_add_u32 s{sHst}, s{sT0}, {WS_UT}\ns_add_u32 s{sXb}, s{sHst}, 0x8000")
    A(f"v_lshlrev_b32 v{vF1}, 7, v0\nv_lshlrev_b32 v{vF3}, 7, v0")
    A(f"s_lshl_b32 s{sT0}, s{sN2}, 12\ns_lshl_b32 s{sT1}, s{sM2}, 2\ns_add_u32 s{sT0}, s{sT0}, s{sT1}\ns_add_u32 s{sT0}, s{sT0}, {WS_F1}")
    flag_lanes(A, vF1, sT0, 32)
    A(f"s_lshr_b32 s{sT0}, s{sP}, 5\ns_lshl_b32 s{sT0}, s{sT0}, 12\ns_and_b32 s{sT1}, s{sP}, 31\ns_lshl_b32 s{sT1}, s{sT1}, 2\ns_add_u32 s{sT0}, s{sT0}, s{sT1}\ns_add_u32 s{sT0}, s{sT0}, {WS_F3}")
    flag_lanes(A, vF3, sT0, 32)
    A(f"s_mul_i32 s{sUB}, s{sCH}, 16640\ns_add_u32 s{sUB}, s{sUB}, {UBASE}\ns_mul_i32 s{sKB}, s{sCH}, 4608\ns_add_u32 s{sKB}, s{sKB}, {KBASE}")
    A(f"s_lshl_b32 s{sF1}, s{sP}, 7\ns_add_u32 s{sF1}, s{sF1}, {WS_F1}")
    vU, vK, vXO, vXP, vUC, vST, vUE = 6, 7, 8, 9, 10, 11, 12
    A(f"v_lshlrev_b32 v{vL16}, 4, v0")
    A("v_lshrrev_b32 v224, 5, v0\nv_bfe_u32 v225, v0, 4, 1\nv_lshlrev_b32 v225, 4, v225")
    A(f"v_mul_u32_u24 v{vU}, {CP}, v233\nv_lshl_add_u32 v{vU}, v224, 5, v{vU}\nv_lshl_add_u32 v{vU}, v234, 3, v{vU}\nv_sub_u32 v{vU}, v{vU}, v225")
    A(f"s_lshl_b32 s{sT0}, s{sHW}, 8\ns_add_u32 s{sT1}, s{sUB}, s{sT0}\ns_add_u32 s{sT1}, s{sT1}, 24\nv_add_u32 v{vU}, s{sT1}, v{vU}")
    A(f"v_sub_u32 v226, v235, v224\nv_lshlrev_b32 v226, 5, v226\nv_add_u32 v{vK}, v226, v225")
    A(f"s_sub_u32 s{sT1}, s{sKB}, s{sT0}\ns_add_u32 s{sT1}, s{sT1}, {512-192}\nv_add_u32 v{vK}, s{sT1}, v{vK}")
    A(f"s_add_u32 s{sT0}, s{sLB}, {KBUF}\nv_add_u32 v{vXO}, s{sT0}, v{vL16}\nv_xor_b32 v{vXP}, 0x1000, v{vXO}")
    A(f"v_lshlrev_b32 v{vST}, 5, v235\nv_lshl_add_u32 v{vST}, v232, 3, v{vST}")
    A(f"s_lshl_b32 s{sT1}, s{sHW}, 11\ns_add_u32 s{sT1}, s{sT1}, s{sUB}\nv_add_u32 v{vUC}, s{sT1}, v{vL16}\nv_add_u32 v{vUE}, s{sT1}, v{vST}")
    A(f"s_add_u32 s{sT0}, s{sT0}, 16384\nv_add_u32 v{vST}, s{sT0}, v{vST}")
    for r_ in range(16): A(f"v_mov_b32 v{KA+r_}, 0")
    A("s_waitcnt lgkmcnt(0)")
    epoch_finish(A)
    A(f"v_mov_b32 v{vEp}, s{sEP}")
    A(f"s_lshl_b32 s{sT0}, s{sCH}, 4\ns_lshr_b32 s{sDS}, s{sDS}, s{sT0}\ns_lshl_b32 s{sDS}, s{sDS}, 16\ns_lshr_b32 s{sDT}, s{sDT}, s{sT0}\ns_lshl_b32 s{sDT}, s{sDT}, 16")
    A(f"v_mov_b32 v41, {LOG2E}\nv_mov_b32 v45, s{sDT}\nv_mul_f32 v42, v45, v41\nv_fma_f32 v43, v45, v41, -v42")
    A("v_fmac_f32 v43, 0x32a57060, v45")
    A("v_exp_f32 v42, v42\nv_mul_f32 v43, 0x3f317218, v43")
    A("v_fma_f32 v42, v42, v43, v42\nv_cvt_pk_bf16_f32 v42, v42, v42\nv_lshlrev_b32 v63, 16, v42")
    A("v_mul_f32 v43, v63, v41\nv_mul_f32 v44, 0.15915494, v63")
    A(f"v_readfirstlane_b32 s{sCA}, v43\nv_readfirstlane_b32 s{sCB}, v44")
    P.stamp("setup")
    A.wait(vm=rtok)
    P.stamp("params")
    if opt.stop == 1: A("s_endpgm")
    for k in range(4): A(f"v_lshlrev_b32 v{20+k}, 16, v{RAW+2+k}\nv_and_b32 v{24+k}, 0xffff0000, v{RAW+2+k}")
    cmul(A, 16, 22, 20, 28)
    cmul(A, 18, 26, 24, 30)
    A("v_max3_f32 v20, abs(v16), abs(v17), abs(v18)\nv_max_f32 v20, abs(v19), v20")
    for m in ("row_shr:1 row_mask:0xf", "row_shr:2 row_mask:0xf", "row_shr:4 row_mask:0xf", "row_shr:8 row_mask:0xf", "row_bcast:15 row_mask:0xa", "row_bcast:31 row_mask:0xc"):
        A(f"v_max_f32_dpp v20, v20, v20 {m} bank_mask:0xf")
    A(f"v_readlane_b32 s{sT0}, v20, 63")
    A(f"s_lshr_b32 s{sT0}, s{sT0}, 23\ns_max_u32 s{sT0}, s{sT0}, 8\ns_sub_u32 s{sT1}, 258, s{sT0}\ns_lshl_b32 s{sT1}, s{sT1}, 23")
    A(f"s_sub_u32 s{sT0}, s{sT0}, 4\ns_lshl_b32 s{sT0}, s{sT0}, 23")
    for k in range(4): A(f"v_mul_f32 v{16+k}, s{sT1}, v{16+k}")
    A(f"v_mul_f32 v63, s{sT0}, v63\nv_readfirstlane_b32 s{sUN}, v63")
    A(f"s_mov_b32 s{sRND}, 0")
    def first_round_only(fn):
        l = uid("fr")
        A(f"s_cmp_lg_u32 s{sRND}, 0\ns_cbranch_scc1 {l}")
        fn()
        A.label(l)
    PCR = 144
    def h1():
        A("s_waitcnt vmcnt(0)\ns_barrier")
        for e in range(2):
            A(f"ds_read_b64_tr_b16 v[{PCR+4*e}:{PCR+1+4*e}], v248 offset:{e*4096}")
            A(f"ds_read_b64_tr_b16 v[{PCR+2+4*e}:{PCR+3+4*e}], v248 offset:{e*4096+512}")
    def h2():
        A("s_waitcnt lgkmcnt(0)")
        for e in range(2): A(f"ds_write_b128 v249, v[{PCR+4*e}:{PCR+3+4*e}] offset:{64*e}")
        for e in range(2): A(f"ds_read_b128 v[{PCR+8+4*e}:{PCR+11+4*e}], v250 offset:{1152*e}")
    def h3():
        A("s_waitcnt lgkmcnt(0)")
        A(f"buffer_store_dwordx4 v[{PCR+8}:{PCR+11}], v251, s[{sWS}:{sWS+3}], s{sHst} offen sc1")
        A(f"buffer_store_dwordx4 v[{PCR+12}:{PCR+15}], v251, s[{sWS}:{sWS+3}], s{sXb} offen sc1")
    R0, R1, QF, PF, S0, S1, D0 = 80, 96, 112, 144, 176, 192, 208
    W, EA, EB, T, TR, TI = 16, 32, 34, 36, 38, 39
    F = {1: 40, 4: 41, 16: 42, 32: 43, 64: 44, 128: 45, 256: 46, 512: 47, 1024: 48}
    E2w, E8w = 50, 52
    A.label("L_kround")
    fine("r_top")
    A(f"v_lshlrev_b32 v20, 16, v{RAW}\nv_lshlrev_b32 v21, 16, v{RAW+1}\nv_lshrrev_b32 v{RAW}, 16, v{RAW}\nv_lshrrev_b32 v{RAW+1}, 16, v{RAW+1}")
    A(f"v_mul_f32 v20, s{sCA}, v20\nv_mul_f32 v21, s{sCB}, v21")
    A("v_mul_f32 v22, 0x42000000, v20\nv_mul_f32 v23, 0x42000000, v21")
    A("v_exp_f32 v20, v20\nv_fract_f32 v21, v21\nv_exp_f32 v22, v22\nv_fract_f32 v23, v23")
    A(f"v_cos_f32 v{EA}, v21\nv_sin_f32 v{EA+1}, v21\nv_cos_f32 v{EB}, v23\nv_sin_f32 v{EB+1}, v23")
    A(f"v_mul_f32 v{EA}, v{EA}, v20\nv_mul_f32 v{EA+1}, v{EA+1}, v20\nv_mul_f32 v{EB}, v{EB}, v22\nv_mul_f32 v{EB+1}, v{EB+1}, v22")
    cv = lambda l, e: A(f"v_cvt_pk_f16_f32 v{F[l]}, v{e}, v{e+1}")
    cv(1, EA); cv(32, EB)
    csq(A, EA, EA, T); cmul(A, E2w, W, EA, T)
    csq(A, EB, EB, T); cv(64, EB)
    csq(A, EA, EA, T); cv(4, EA)
    csq(A, EB, EB, T); cv(128, EB)
    first_round_only(h1)
    csq(A, EA, EA, T); cmul(A, E8w, W, EA, T)
    A(f"v_cvt_pk_f16_f32 v{R0}, 1.0, v{EA}\nv_cvt_pk_f16_f32 v{R1}, 0, -v{EA+1}")
    for l in (256, 512, 1024):
        csq(A, EB, EB, T); cv(l, EB)
    csq(A, EA, EA, T); cv(16, EA)
    A(f"v_cvt_pk_f16_f32 v{S0}, v{W}, v{E2w}\nv_cvt_pk_f16_f32 v{S1}, v{W+1}, v{E2w+1}")
    A(f"v_cvt_pk_f16_f32 v{TR}, v{W}, v{E8w}\nv_cvt_pk_f16_f32 v{TI}, v{W+1}, v{E8w+1}")
    A("v_mov_b32 v16, v18\nv_mov_b32 v17, v19")
    first_round_only(h2)
    fine("r_fac")
    hm = lambda d, sr, si, l: hmul(A, S0 + d, S1 + d, sr, si, F[l])
    hp = lambda d, sidx, l: hm(d, S0 + sidx, S1 + sidx, l)
    hp(1, 0, 1); hp(2, 0, 4); hp(3, 1, 4)
    hp(4, 0, 256); hp(6, 2, 256); hm(7, TR, TI, 256)
    A(f"v_alignbit_b32 v{S0+5}, v{S0+6}, v{S0+6}, 16\nv_alignbit_b32 v{S1+5}, v{S1+6}, v{S1+6}, 16")
    hm(8, TR, TI, 512); hp(9, 2, 512)
    first_round_only(h3)
    hp(10, 7, 512); hp(11, 6, 512)
    hm(12, TR, TI, 1024); hp(13, 7, 1024); hp(14, 8, 1024); hp(15, 10, 1024)
    fine("r_p")
    def swaps(pl): return [f"v_permlane32_swap_b32 v{pl+8*kh+i}, v{pl+8*kh+4+i}" for kh in range(2) for i in range(4)]
    def tmf(d, pl, nh):
        return [f"v_mfma_f32_32x32x16_f16 v[{d}:{d+15}], v[{pl+4*nh}:{pl+4*nh+3}], v[{SEL}:{SEL+3}], 0",
                f"v_mfma_f32_32x32x16_f16 v[{d}:{d+15}], v[{pl+8+4*nh}:{pl+8+4*nh+3}], v[{SEL+4}:{SEL+7}], v[{d}:{d+15}]"]
    def cvts(dst, d): return [f"v_cvt_pk_f16_f32 v{dst+i}, v{d+2*i}, v{d+2*i+1}" for i in range(8)]
    B = Asm()
    n = 1
    for l in (16, 32, 64, 128):
        for i in range(n): hmul(B, R0 + n + i, R1 + n + i, R0 + i, R1 + i, F[l], conj=True)
        n *= 2
    qv = B.lines
    def weave(valu, mf, gap, lead=0):
        valu = list(valu); mf = list(mf)
        for _ in range(lead): A(valu.pop(0))
        while valu or mf:
            if mf: A(mf.pop(0))
            for _ in range(gap):
                if valu: A(valu.pop(0))
    PD = [D0, D0 + 16, QF, QF + 16]
    QD = [D0, D0 + 16, S0, S1]
    fin = lambda i: f"v_mfma_f32_32x32x16_f16 v[{KA}:{KA+15}], v[{PF+4*i}:{PF+4*i+3}], v[{QF+4*i}:{QF+4*i+3}], v[{KA}:{KA+15}]"
    if opt.vfirst:
        for x in qv + swaps(S0) + swaps(S1) + swaps(R0) + swaps(R1): A(x)
        fine("r_q")
        for x in tmf(PD[0], S0, 0) + tmf(PD[1], S0, 1): A(x)
        weave(cvts(PF, PD[0]) + cvts(PF + 8, PD[1]), tmf(PD[2], S1, 0) + tmf(PD[3], S1, 1), 4)
        weave(cvts(PF + 16, PD[2]) + cvts(PF + 24, PD[3]), tmf(QD[0], R0, 0) + tmf(QD[1], R0, 1), 4)
        weave(cvts(QF, QD[0]) + cvts(QF + 8, QD[1]), tmf(QD[2], R1, 0) + tmf(QD[3], R1, 1), 4)
        weave(cvts(QF + 16, QD[2]) + cvts(QF + 24, QD[3]), [fin(0), fin(1), fin(2), fin(3)], 4)
    else:
        for x in swaps(S0): A(x)
        weave(swaps(S1) + qv, tmf(PD[0], S0, 0) + tmf(PD[1], S0, 1) + tmf(PD[2], S1, 0) + tmf(PD[3], S1, 1), 6, lead=2)
        fine("r_q")
        for x in cvts(PF, PD[0]) + cvts(PF + 8, PD[1]) + swaps(R0): A(x)
        weave(swaps(R1) + cvts(PF + 16, PD[2]) + cvts(PF + 24, PD[3]), tmf(QD[0], R0, 0) + tmf(QD[1], R0, 1), 6, lead=2)
        fin = lambda i: f"v_mfma_f32_32x32x16_f16 v[{KA}:{KA+15}], v[{PF+4*i}:{PF+4*i+3}], v[{QF+4*i}:{QF+4*i+3}], v[{KA}:{KA+15}]"
        weave(cvts(QF, QD[0]) + cvts(QF + 8, QD[1]), tmf(QD[2], R1, 0) + tmf(QD[3], R1, 1), 4)
        weave(cvts(QF + 16, QD[2]) + cvts(QF + 24, QD[3]), [fin(0), fin(1), fin(2), fin(3)], 4)
    for i in range(4, 8): A(fin(i))
    fine("r_mfma")
    A(f"s_cmp_eq_u32 s{sRND}, 1\ns_cbranch_scc1 L_kdone")
    A(f"s_mov_b32 s{sRND}, 1")
    A("s_waitcnt vmcnt(0)\ns_barrier")
    A(f"buffer_store_dword v{vEp}, v{vF1}, s[{sWS}:{sWS+3}], 0 offen sc1")
    if opt.stop == 2: A("s_endpgm")
    if opt.kprio2 >= 0: A(f"s_setprio {opt.kprio2}")
    A("s_branch L_kround")
    A.label("L_kdone")
    P.stamp("kgen")
    if opt.stop == 4: A("s_endpgm")
    if opt.cprio != opt.kprio: A(f"s_setprio {opt.cprio}")
    poll_issue(A, sF1, 32)
    for k in range(2): A(f"v_add_u32 v{20+k}, {2*CP + 36 + k*1024}, v{vUC}\nv_add_u32 v{22+k}, {3*CP + 36 + k*1024}, v{vUC}")
    A(f"v_and_b32 v16, 31, v0\nv_lshlrev_b32 v16, 4, v16\nv_add_u32 v16, s{sKB}, v16\nv_lshrrev_b32 v17, 5, v0")
    A("v_lshl_add_u32 v18, v17, 3, v16\nv_lshl_add_u32 v19, v17, 9, v16\nv_lshl_add_u32 v16, v17, 10, v16")
    A("v_and_b32 v17, 1, v0\nv_cmp_eq_u32 vcc, 1, v17")
    A("s_nop 7")
    for r_ in range(16): A(f"v_mul_f32 v{KA+r_}, s{sUN}, v{KA+r_}")
    A(f"s_cmp_eq_u32 s{sHW}, 0\ns_cbranch_scc1 L_even0")
    for k in range(2): A(f"ds_write_b128 v{vXO}, v[{KA+4*k}:{KA+4*k+3}] offset:{k*1024}")
    A(f"v_lshlrev_b32 v56, 3, v0\nv_add_u32 v56, s{sKB}, v56\nv_mov_b32 v58, 0\nv_mov_b32 v59, 0\nds_write_b64 v56, v[58:59]")
    for r_ in range(8): A(f"v_mov_b32 v{32+r_}, v{KA+8+r_}")
    A("s_branch L_join0")
    A.label("L_even0")
    for k in range(2): A(f"ds_write_b128 v{vXO}, v[{KA+8+4*k}:{KA+8+4*k+3}] offset:{k*1024}")
    A(f"v_lshrrev_b32 v56, 4, v0\nv_mul_u32_u24 v56, {CP}, v56\nv_and_b32 v57, 15, v0\nv_lshl_add_u32 v56, v57, 2, v56\nv_add_u32 v56, s{sUB}, v56\nv_mov_b32 v57, 0")
    A("ds_write_b32 v56, v57")
    for r_ in range(8): A(f"v_mov_b32 v{32+r_}, v{KA+r_}")
    A.label("L_join0")
    poll_check(A, sF1, 32, slp=opt.slp)
    P.stamp("flagU")
    UR = 176
    A(f"s_lshl_b32 s{sT2}, s{sD}, 12\ns_lshl_b32 s{sT0}, s{sHW}, 11\ns_add_u32 s{sT2}, s{sT2}, s{sT0}\ns_add_u32 s{sT2}, s{sT2}, {WS_UT}")
    for k in range(2): A(f"buffer_load_dwordx4 v[{UR+4*k}:{UR+4*k+3}], v{vL16}, s[{sWS}:{sWS+3}], s{sT2} offen offset:{k*1024} sc1")
    A(f"s_cmp_eq_u32 s{sHW}, 0\ns_cselect_b32 s{sT0}, 2.0, 0\nv_mov_b32 v40, 2.0\nv_writelane_b32 v40, s{sT0}, 0\ns_sub_u32 s{sT3}, s{sT2}, 4")
    A(f"buffer_load_dword v{UR+8}, v40, s[{sWS}:{sWS+3}], s{sT3} offen sc1")
    A("s_barrier")
    for k in range(2): A(f"ds_read_b128 v[{24+4*k}:{27+4*k}], v{vXP} offset:{k*1024}")
    A("s_waitcnt lgkmcnt(0)")
    for i in range(8): A(f"v_add_f32 v{24+i}, v{24+i}, v{32+i}")
    r = lambda i: f"v{24+i}"
    O = 60
    A(f"s_cmp_eq_u32 s{sHW}, 0\ns_cbranch_scc1 L_even1")
    A(f"v_cvt_pk_bf16_f32 v{O}, {r(0)}, {r(0)}\nv_cvt_pk_bf16_f32 v{O+1}, {r(0)}, {r(2)}\nv_cvt_pk_bf16_f32 v{O+2}, {r(2)}, {r(2)}\nv_cvt_pk_bf16_f32 v{O+3}, {r(1)}, {r(1)}")
    A(f"ds_write_b128 v19, v[{O}:{O+3}] offset:1536")
    for e in range(2):
        a0, a8, o = 4 + 2 * e, 5 + 2 * e, O + 4 + 4 * e
        A(f"v_cndmask_b32 v17, {r(a0)}, {r(a8)}, vcc")
        A(f"v_cvt_pk_bf16_f32 v{o}, {r(a0)}, {r(a0)}\nv_cvt_pk_bf16_f32 v{o+2}, v17, {r(a8)}\nv_cvt_pk_bf16_f32 v{o+3}, {r(a8)}, {r(a8)}\nv_mov_b32 v{o+1}, v{o}")
        A(f"ds_write_b128 v16, v[{o}:{o+3}] offset:{2560 + 512*e}")
    A("s_branch L_join1")
    A.label("L_even1")
    A(f"v_cvt_pk_bf16_f32 v{O}, {r(0)}, {r(2)}\nv_cvt_pk_bf16_f32 v{O+1}, {r(1)}, {r(3)}\nv_cvt_pk_bf16_f32 v{O+2}, {r(4)}, {r(4)}\nv_cvt_pk_bf16_f32 v{O+3}, {r(5)}, {r(7)}")
    A(f"ds_write_b64 v18, v[{O}:{O+1}] offset:512\nds_write_b64 v18, v[{O+2}:{O+3}] offset:1024")
    A.label("L_join1")
    A("s_waitcnt vmcnt(0)")
    A(f"v_readlane_b32 s{sT0}, v{UR+3}, 63")
    A(f"v_mov_b32_dpp v{UR+8}, v{UR+3} wave_shr:1 row_mask:0xf bank_mask:0xf")
    A(f"v_mov_b32 v{UR+9}, s{sT0}")
    A(f"v_mov_b32_dpp v{UR+9}, v{UR+7} wave_shr:1 row_mask:0xf bank_mask:0xf")
    OD = 188
    for k in range(2):
        A(f"ds_write_b128 v{vUC}, v[{UR+4*k}:{UR+4*k+3}] offset:{32 + k*1024}")
        A(f"v_alignbit_b32 v{OD+4*k}, v{UR+4*k}, v{UR+8+k}, 16")
        for i in range(1, 4): A(f"v_alignbit_b32 v{OD+4*k+i}, v{UR+4*k+i}, v{UR+4*k+i-1}, 16")
        A(f"ds_write2_b32 v{20+k}, v{UR+4*k}, v{UR+4*k+1} offset0:0 offset1:1")
        A(f"ds_write2_b32 v{20+k}, v{UR+4*k+2}, v{UR+4*k+3} offset0:2 offset1:3")
        A(f"ds_write_b128 v{vUC}, v[{OD+4*k}:{OD+4*k+3}] offset:{CP + 32 + k*1024}")
        A(f"ds_write2_b32 v{22+k}, v{OD+4*k}, v{OD+4*k+1} offset0:0 offset1:1")
        A(f"ds_write2_b32 v{22+k}, v{OD+4*k+2}, v{OD+4*k+3} offset0:2 offset1:3")
    A.wait_all(vm=False)
    A("s_barrier")
    P.stamp("prep")
    if opt.stop == 6: A("s_endpgm")
    CA = 20; SET = [64, 128]; UE = 192
    def loads(rho):
        b = SET[rho & 1]; L = []
        for i in range(8):
            L.append(f"ds_read_b64_tr_b16 v[{b+4*i}:{b+4*i+1}], v{vU} offset:{64*rho + 512*i + 8}")
            L.append(f"ds_read_b64_tr_b16 v[{b+4*i+2}:{b+4*i+3}], v{vU} offset:{64*rho + 512*i}")
            L.append(f"ds_read_b128 v[{b+32+4*i}:{b+32+4*i+3}], v{vK} offset:{192 - 64*rho + 512*i}")
        return L
    for x in loads(0): A(x)
    A(f"s_lshl_b32 s{sT2}, s{sD}, 12\ns_lshl_b32 s{sT0}, s{sHW}, 11\ns_add_u32 s{sT2}, s{sT2}, s{sT0}\ns_add_u32 s{sT2}, s{sT2}, {WS_AT}")
    first = set()
    for rho in range(4):
        A("s_waitcnt lgkmcnt(0)")
        b = SET[rho & 1]
        nxt = loads(rho + 1) if rho < 3 else [f"ds_read_b64 v[{UE+2*k}:{UE+2*k+1}], v{vUE} offset:{32 + 512*k}" for k in range(4)]
        pairs = [(be, de) for be in range(8) for de in range(8 - be)]
        for (be, de) in pairs:
            a = CA + 4 * (be + de)
            cin = f"v[{a}:{a+3}]" if (be + de) in first else "0"
            first.add(be + de)
            A(f"v_mfma_f32_16x16x32_bf16 v[{a}:{a+3}], v[{b+4*be}:{b+4*be+3}], v[{b+32+4*de}:{b+32+4*de+3}], {cin}")
            if nxt: A(nxt.pop(0))
    P.stamp("conv")
    if opt.stop == 7: A("s_endpgm")
    A("s_waitcnt lgkmcnt(0)")
    for k in range(8): A(f"v_lshlrev_b32 v{96+2*k}, 16, v{UE+k}\nv_and_b32 v{97+2*k}, 0xffff0000, v{UE+k}")
    A(f"s_cmp_eq_u32 s{sHW}, 0\ns_cbranch_scc1 L_even2")
    for k in range(4): A(f"ds_write_b128 v{vXO}, v[{CA+4*k}:{CA+4*k+3}] offset:{k*1024}")
    for k in range(16): A(f"v_fma_f32 v{96+k}, s{sDS}, v{96+k}, v{CA+16+k}")
    A("s_branch L_join2")
    A.label("L_even2")
    for k in range(4): A(f"ds_write_b128 v{vXO}, v[{CA+16+4*k}:{CA+16+4*k+3}] offset:{k*1024}")
    for k in range(16): A(f"v_fma_f32 v{96+k}, s{sDS}, v{96+k}, v{CA+k}")
    A.label("L_join2")
    A("s_waitcnt lgkmcnt(0)\ns_barrier")
    for k in range(4): A(f"ds_read_b128 v[{64+4*k}:{67+4*k}], v{vXP} offset:{k*1024}")
    for k in range(4):
        A(f"s_waitcnt lgkmcnt({3-k})")
        for i in range(4): A(f"v_add_f32 v{96+4*k+i}, v{96+4*k+i}, v{64+4*k+i}")
        A(f"v_cvt_pk_bf16_f32 v{80+2*k}, v{96+4*k}, v{97+4*k}\nv_cvt_pk_bf16_f32 v{81+2*k}, v{98+4*k}, v{99+4*k}")
    for k in range(4): A(f"ds_write_b64 v{vST}, v[{80+2*k}:{81+2*k}] offset:{512*k}")
    for k in range(2): A(f"ds_read_b128 v[{88+4*k}:{91+4*k}], v{vXO} offset:{16384 + 1024*k}")
    for k in range(2):
        A(f"s_waitcnt lgkmcnt({1-k})")
        A(f"buffer_store_dwordx4 v[{88+4*k}:{91+4*k}], v{vL16}, s[{sWS}:{sWS+3}], s{sT2} offen offset:{1024*k} sc1")
    A("s_waitcnt vmcnt(0)\ns_barrier")
    A(f"buffer_store_dword v{vEp}, v{vF3}, s[{sWS}:{sWS+3}], 0 offen sc1")
    P.stamp("end")
    P.flush(4)
    A("s_endpgm")
    return P.names

def aux_role(A, opt):
    A.label("L_aux")
    A(f"s_lshl_b32 s{sT0}, s{sM2}, 2\ns_add_u32 s{sXb}, s{sT0}, s{sWAVE}\ns_mul_i32 s{sT2}, s{sXb}, 14336")
    A("v_lshlrev_b32 v1, 4, v0\nv_cmp_gt_u32 vcc, 56, v0\nv_cndmask_b32 v2, 2.0, v1, vcc")
    after_kernarg(A)
    srd(A, sX, 4, 1835008); srd(A, sW, 30, 896)
    GX, GW = 32, 28
    A.vmop(f"buffer_load_dwordx4 v[{GW}:{GW+3}], v2, s[{sW}:{sW+3}], 0 offen")
    xt = []
    for r_ in range(16):
        xt.append(A.vmop(f"buffer_load_dwordx4 v[{GX+4*r_}:{GX+4*r_+3}], v2, s[{sX}:{sX+3}], s{sT2} offen offset:{896*(r_%4)}"))
        if r_ % 4 == 3 and r_ < 15: A(f"s_add_u32 s{sT2}, s{sT2}, 3584")
    srd(A, sWS, 36, WS_SPAN); srd(A, sWd, 28, 1605632)
    A("s_waitcnt lgkmcnt(0)")
    epoch_finish(A)
    AC = 8
    for r_ in range(16):
        A.wait(vm=xt[r_])
        for k in range(4):
            A(f"v_dot2_f32_bf16 v{AC+r_}, v{GX+4*r_+k}, v{GW+k}, " + ("0" if k == 0 else f"v{AC+r_}"))
    halves = [h for h in (0, 1) if opt.pf >> h & 1]
    sPF, sPE, sBL = sXo, sWo, sDo
    A("s_nop 2")
    for m in ("row_shr:1 row_mask:0xf bank_mask:0xf bound_ctrl:0", "row_shr:2 row_mask:0xf bank_mask:0xf bound_ctrl:0", "row_shr:4 row_mask:0xf bank_mask:0xf bound_ctrl:0",
              "row_shr:8 row_mask:0xf bank_mask:0xf bound_ctrl:0", "row_bcast:15 row_mask:0xa bank_mask:0xf", "row_bcast:31 row_mask:0xc bank_mask:0xf"):
        for r_ in range(16): A(f"v_add_f32_dpp v{AC+r_}, v{AC+r_}, v{AC+r_} {m}")
    for r_ in range(16):
        A(f"v_readlane_b32 s{4+r_}, v{AC+r_}, 63")
    A("v_mov_b32 v3, 0")
    for r_ in range(16):
        A(f"v_writelane_b32 v3, s{4+r_}, {r_}")
    A("v_cvt_pk_bf16_f32 v4, v3, v3\nv_lshlrev_b32 v3, 16, v4")
    A(f"v_mul_f32 v3, {NLOG2E}, v3\nv_exp_f32 v3, v3\nv_add_f32 v3, 1.0, v3\nv_rcp_f32 v3, v3")
    A("v_cvt_pk_bf16_f32 v4, v3, v3\nv_lshlrev_b32 v3, 16, v4\nv_sub_f32 v5, 1.0, v3\nv_cvt_pk_bf16_f32 v4, v3, v5")
    A(f"v_mov_b32 v5, s{sEP}\nv_lshlrev_b32 v6, 3, v0\nv_cmp_gt_u32 vcc, 16, v0\nv_cndmask_b32 v6, 2.0, v6, vcc")
    A(f"s_lshl_b32 s{sT0}, s{sXb}, 7\ns_add_u32 s{sT0}, s{sT0}, {WS_GATE}")
    A(f"buffer_store_dwordx2 v[4:5], v6, s[{sWS}:{sWS+3}], s{sT0} offen sc1")
    for h in halves:
        lp = uid("pf")
        A(f"s_and_b32 s{sPF}, s{sSLOT}, 3\ns_lshl_b32 s{sPF}, s{sPF}, 2\ns_add_u32 s{sPF}, s{sPF}, s{sWAVE}\ns_lshl_b32 s{sPF}, s{sPF}, 10")
        A(f"s_lshl_b32 s{sT0}, s{sXC}, 1\ns_sub_u32 s{sT1}, s{sT0}, 14\ns_cselect_b32 s{sT0}, s{sT0}, s{sT1}\ns_mul_i32 s{sBL}, s{sT0}, 114688")
        A(f"s_mov_b32 s{sPE}, 0")
        A.label(lp)
        A(f"s_add_u32 s{sT2}, s{sBL}, s{sPF}")
        if h: A(f"s_add_u32 s{sT2}, s{sT2}, 57344")
        A("s_waitcnt vmcnt(9)")
        A(f"buffer_load_dwordx4 v[32:35], v1, s[{sWd}:{sWd+3}], s{sT2} offen")
        nx = uid("pn")
        A(f"s_add_u32 s{sPF}, s{sPF}, 16384\ns_cmp_lt_u32 s{sPF}, 57344\ns_cbranch_scc1 {nx}")
        A(f"s_sub_u32 s{sPF}, s{sPF}, 57344")
        wrap_add(A, sBL, 114688, 1605632)
        A.label(nx)
        A(f"s_add_u32 s{sPE}, s{sPE}, 1\ns_cmp_lt_u32 s{sPE}, 49\ns_cbranch_scc1 {lp}")
    A(f"s_cmp_lg_u32 s2, 224\ns_cbranch_scc1 L_end\ns_cmp_lg_u32 s{sWAVE}, 0\ns_cbranch_scc1 L_end")
    A(f"s_mov_b32 s{sSPIN}, 0")
    A("v_and_b32 v1, 15, v0\nv_min_u32 v1, 13, v1\nv_lshrrev_b32 v2, 4, v0\nv_lshlrev_b32 v2, 8, v2\nv_lshl_add_u32 v1, v1, 2, v2")
    A("v_lshlrev_b32 v2, 7, v0\nv_add_u32 v2, 4, v2")
    A("v_and_b32 v3, 31, v0\nv_lshrrev_b32 v4, 5, v0\nv_lshlrev_b32 v4, 12, v4\nv_lshl_add_u32 v3, v3, 2, v4")
    A.label("L_upd")
    regs = []
    A(f"s_mov_b32 s{sT0}, {WS_F2 + 224*128}")
    for k in range(4): A(f"buffer_load_dword v{40+k}, v1, s[{sWS}:{sWS+3}], s{sT0} offen offset:{1024*k} sc1"); regs.append(40 + k)
    for k in range(2): A(f"s_mov_b32 s{sT0}, {WS_GATE + 8192*k}\nbuffer_load_dword v{44+k}, v2, s[{sWS}:{sWS+3}], s{sT0} offen sc1"); regs.append(44 + k)
    if not (opt.nossm or opt.stop == 1):
        for k, base in enumerate((0, 8192, 16384, 20480)):
            A(f"s_mov_b32 s{sT0}, {WS_F1 + base}\nbuffer_load_dword v{46+k}, v3, s[{sWS}:{sWS+3}], s{sT0} offen sc1"); regs.append(46 + k)
    A("s_waitcnt vmcnt(0)")
    A("v_mov_b32 v5, 0")
    for k in regs: A(f"v_xor_b32 v6, s{sEP}, v{k}\nv_or_b32 v5, v5, v6")
    A("v_cmp_ne_u32 vcc, 0, v5")
    A("s_cbranch_vccz L_upd_ok")
    A(f"s_add_u32 s{sSPIN}, s{sSPIN}, 1\ns_cmp_ge_u32 s{sSPIN}, {SPIN_MAX}\ns_cbranch_scc1 L_upd_ok")
    A("s_sleep 8\ns_branch L_upd")
    A.label("L_upd_ok")
    A(f"v_mov_b32 v3, 2.0\nv_writelane_b32 v3, 0, 0\nv_mov_b32 v4, s{sEP}")
    A(f"buffer_store_dword v4, v3, s[{sWS}:{sWS+3}], 0 offen sc1")
    A("s_endpgm")

def build(opt):
    A = Asm()
    A(f"s_cmp_ge_u32 s2, {NWG}\ns_cbranch_scc1 L_end")
    if opt.prof or opt.echo: A("s_memrealtime s[38:39]")
    A("s_load_dwordx16 s[4:19], s[0:1], 0\ns_load_dwordx16 s[20:35], s[0:1], 64\ns_load_dwordx2 s[36:37], s[0:1], 128")
    A(f"v_lshrrev_b32 v1, 6, v0\nv_and_b32 v0, 63, v0\nv_readfirstlane_b32 s{sWAVE}, v1")
    A(f"s_and_b32 s{sXC}, s2, 7\ns_bfe_u32 s{sSLOT}, s2, 0x50003")
    A(f"s_and_b32 s{sT0}, s{sXC}, 3\ns_lshl_b32 s{sT0}, s{sT0}, 3\ns_lshr_b32 s{sT1}, s{sXC}, 2\ns_lshl_b32 s{sT1}, s{sT1}, 2\ns_add_u32 s{sT0}, s{sT0}, s{sT1}")
    A(f"s_and_b32 s{sT1}, s{sSLOT}, 3\ns_add_u32 s{sM2}, s{sT0}, s{sT1}\ns_lshr_b32 s{sN2}, s{sSLOT}, 2\ns_lshl_b32 s{sLB}, s{sWAVE}, 12")
    A("s_cmp_ge_u32 s2, 256\ns_cbranch_scc1 L_ssm\ns_cmp_ge_u32 s2, 224\ns_cbranch_scc1 L_aux")
    names = {}
    names["gemm"] = gemm_role(A, opt)
    names["ssm"] = ssm_role(A, opt)
    aux_role(A, opt)
    A.label("L_end")
    A("s_endpgm")
    body, nn = hazard_pass(A.lines)
    ref = open(f"cdna_kernels/{NAME}.s.ref").read().split("\n")
    head = [l for l in ref if l.startswith(";") and "@launch" not in l]
    out = head + [f"; @launch grid=({NWG},1,1) block=(256,1,1) lds=81920",
                  '.amdgcn_target "amdgcn-amd-amdhsa--gfx950"', ".text", f".globl {NAME}_kernel", ".p2align 8",
                  f".type {NAME}_kernel,@function", f"{NAME}_kernel:"]
    out += [("    " + l if not l.endswith(":") else l) for l in body]
    out += ['.section .rodata,"a"', ".p2align 6", f".amdhsa_kernel {NAME}_kernel",
            "  .amdhsa_next_free_vgpr 256", "  .amdhsa_next_free_sgpr 102", "  .amdhsa_accum_offset 256",
            "  .amdhsa_group_segment_fixed_size 0", "  .amdhsa_kernarg_size 136", "  .amdhsa_user_sgpr_count 2",
            "  .amdhsa_user_sgpr_kernarg_segment_ptr 1", "  .amdhsa_system_sgpr_workgroup_id_x 1", ".end_amdhsa_kernel"]
    return "\n".join(out) + "\n", names, nn

if __name__ == "__main__":
    opt = Opt()
    path = sys.argv[1] if len(sys.argv) > 1 else f"cdna_kernels/{NAME}.s"
    for kv in sys.argv[2:]:
        k, val = kv.split("=")
        assert hasattr(opt, k), k
        setattr(opt, k, int(val) if val.lstrip("-").isdigit() else val)
    txt, names, nn = build(opt)
    open(path, "w").write(txt)
    import json
    open(path + ".names.json", "w").write(json.dumps(names))
    print("wrote", path, "lines", txt.count("\n"), "nops inserted", nn)
```

```python
import sys
from asmlib import *

NAME = "gated_mix__ssm_conv_s4__swiglu_ffn__prompt"
WS_GATE, WS_F1, WS_F3, WS_F2, WS_FK = 0x8000, 0x10000, 0x18000, 0x20000, 0x30000
WS_PROF = 0x40000
WS_UT, WS_AT, WS_H, WS_KP = 0x100000, 0x300000, 0x500000, 0xC00000
WS_SPAN = 0x1000000
NWG = 480
SPIN_MAX = 20000
LOG2E = 0x3fb8aa3b
NLOG2E = 0xbfb8aa3b
KBUF = 49152

class Opt:
    prof = 0
    lightprof = 1
    echo = ''
    rot1 = 1
    rot2 = 1
    npre = 6
    pdh = 6
    flagstep = 2
    pollb = 11
    polly = 22
    gprio = 1
    kprio = 2
    cprio = 0
    epk = 0
    pf = 3
    nossm = 0
    stop = 0
    slp = 8
    fine = 0
    gdelay = 1
    dbg = -1
    emul = 1
    kprio2 = 0
    vfirst = 0

sX, sW, sWd, sWS, sO, sH = 40, 44, 48, 52, 56, 68
sWAVE, sM, sJ, sEP, sM2, sN2, sXC, sSLOT = 60, 61, 62, 63, 64, 65, 66, 67
sT0, sT1, sT2, sT3 = 72, 73, 74, 75
sK0 = 76
sXo, sWo, sDo, sHo, sLB = 78, 79, 80, 81, 82
sXb, sWb, sHst = 83, 84, 85
sSPIN, sLine, sC8K = 86, 87, 39
sEP2 = 88
sP, sDT, sDS, sCA, sCB, sUN, sFKV = 92, 93, 94, 95, 96, 97, 98
sOut = 99
sU0, sU1 = 98, 3
sDB = 94

def srd(A, d, lo, size):
    A(f"s_mov_b32 s{d}, s{lo}\ns_mov_b32 s{d+1}, s{lo+1}\ns_mov_b32 s{d+2}, {size}\ns_mov_b32 s{d+3}, 0x20000")

EMUL = [1]
class Prof:
    def __init__(self, A, on, vreg, echo=''):
        self.A, self.on, self.vreg, self.n = A, on, vreg, 0
        self.names = []; self.echo = echo; self.dbg = None
    def stamp(self, name):
        A = self.A
        if self.echo and name == self.echo:
            A("s_memrealtime s[90:91]"); A.wait_all(vm=False); A("s_sub_u32 s3, s90, s38")
        if self.echo and name == "end":
            A("s_memrealtime s[90:91]\ns_waitcnt lgkmcnt(0)\ns_mov_b32 s38, s90\ns_mul_i32 s3, s3, %d\ns_min_u32 s3, s3, 20000" % EMUL[0])
            A.label("L_echo")
            A("s_memrealtime s[90:91]\ns_waitcnt lgkmcnt(0)\ns_sub_u32 s90, s90, s38\ns_cmp_lt_u32 s90, s3\ns_cbranch_scc1 L_echo")
        if not self.on: return
        if self.n == 0:
            A(f"v_writelane_b32 v{self.vreg}, s38, 0")
            self.names.append("start"); self.n += 1
        A("s_memrealtime s[90:91]")
        A("s_memtime s[100:101]")
        A.wait_all(vm=False)
        A(f"v_writelane_b32 v{self.vreg}, s100, {32 + self.n}")
        A(f"v_writelane_b32 v{self.vreg}, s90, {self.n}")
        assert self.n < 32
        self.names.append(name); self.n += 1
    def flush(self, tmp):
        if not self.on: return
        A = self.A
        A(f"s_lshl_b32 s90, s2, 2\ns_add_u32 s90, s90, s{sWAVE}\ns_lshl_b32 s90, s90, 8\ns_add_u32 s90, s90, {WS_PROF}")
        A(f"v_lshlrev_b32 v{tmp}, 2, v0")
        A(f"buffer_store_dword v{self.vreg}, v{tmp}, s[{sWS}:{sWS+3}], s90 offen")
        if self.dbg is not None:
            l = uid("dbg")
            A(f"s_cmp_lg_u32 s2, {self.dbg}\ns_cbranch_scc1 {l}\ns_cmp_lg_u32 s{sWAVE}, 0\ns_cbranch_scc1 {l}")
            A("s_load_dwordx2 s[4:5], s[0:1], 120\ns_waitcnt lgkmcnt(0)")
            srd(A, 8, 4, 64)
            A(f"v_subrev_u32 v{self.vreg}, s38, v{self.vreg}")
            A(f"buffer_store_dword v{self.vreg}, v{tmp}, s[8:11], 0 offen")
            A.label(l)

def epoch_finish(A):
    A(f"s_mul_i32 s{sEP}, s{sEP}, 0x9E3779B1\ns_add_u32 s{sEP}, s{sEP}, 0x7F4A7C15")
    A(f"s_mov_b32 s{sEP2}, s{sEP}\ns_mov_b32 s{sEP2+1}, s{sEP}")

def after_kernarg(A):
    A("s_waitcnt lgkmcnt(0)")
    A(f"s_load_dword s{sEP}, s[36:37], 0")

_uid = [0]
def uid(p):
    _uid[0] += 1; return f"L_{p}{_uid[0]}"

def poll_issue(A, soff, n, extra=None):
    A(f"s_load_dwordx16 s[4:19], s[36:37], s{soff} glc")
    if n > 16:
        A(f"s_add_u32 s{sT3}, s{soff}, 64")
        A(f"s_load_dwordx16 s[20:35], s[36:37], s{sT3} glc" if n > 18 else f"s_load_dwordx2 s[20:21], s[36:37], s{sT3} glc")
    if extra is not None:
        A(f"s_add_u32 s{sT3}, s{soff}, {extra}")
        A(f"s_load_dword s{sFKV}, s[36:37], s{sT3} glc")

def poll_check(A, soff, n, extra=None, slp=2):
    top, bad, ok = uid("pt"), uid("pb"), uid("po")
    A(f"s_mov_b32 s{sSPIN}, 0")
    A.label(top)
    A.wait_all(vm=False)
    for i in range(0, n, 2):
        A(f"s_cmp_eq_u64 s[{4+i}:{5+i}], s[{sEP2}:{sEP2+1}]")
        A(f"s_cbranch_scc0 {bad}")
    if extra is not None:
        A(f"s_cmp_eq_u32 s{sFKV}, s{sEP}\ns_cbranch_scc0 {bad}")
    A(f"s_branch {ok}")
    A.label(bad)
    A(f"s_add_u32 s{sSPIN}, s{sSPIN}, 1\ns_cmp_ge_u32 s{sSPIN}, {SPIN_MAX}\ns_cbranch_scc1 {ok}")
    A(f"s_sleep {slp}")
    poll_issue(A, soff, n, extra)
    A(f"s_branch {top}")
    A.label(ok)

def flag_lanes(A, vd, sbase, nl):
    A(f"s_cmp_eq_u32 s{sWAVE}, 0\ns_cselect_b32 s{sT3}, {nl}, 0")
    A(f"v_add_u32 v{vd}, s{sbase}, v{vd}\nv_cmp_gt_u32 vcc, s{sT3}, v0")
    A(f"v_cndmask_b32 v{vd}, 2.0, v{vd}, vcc")

def wrap_add(A, reg, step, limit):
    A(f"s_add_u32 s{sT0}, s{reg}, {step}\ns_sub_u32 s{sT1}, s{sT0}, {limit}\ns_cselect_b32 s{reg}, s{sT0}, s{sT1}")

def cmul(A, d, a, b, t):
    A(f"v_mul_f32 v{t}, v{a+1}, v{b+1}\nv_mul_f32 v{t+1}, v{a+1}, v{b}")
    A(f"v_fma_f32 v{d+1}, v{a}, v{b+1}, v{t+1}\nv_fma_f32 v{d}, v{a}, v{b}, -v{t}")

def hmul(A, dr, di, sr, si, F, conj=False):
    n = "neg_lo:[1,0,0] neg_hi:[1,0,0]"
    A(f"v_pk_mul_f16 v{dr}, v{sr}, v{F} op_sel_hi:[1,0]")
    A(f"v_pk_mul_f16 v{di}, v{si}, v{F} op_sel_hi:[1,0]")
    A(f"v_pk_fma_f16 v{dr}, v{si}, v{F}, v{dr} op_sel:[0,1,0] op_sel_hi:[1,1,1] {'' if conj else n}")
    A(f"v_pk_fma_f16 v{di}, v{sr}, v{F}, v{di} op_sel:[0,1,0] op_sel_hi:[1,1,1] {n if conj else ''}")

def csq(A, d, a, t):
    A(f"v_mul_f32 v{t}, v{a+1}, v{a+1}\nv_add_f32 v{t+1}, v{a}, v{a}")
    A(f"v_fma_f32 v{d}, v{a}, v{a}, -v{t}\nv_mul_f32 v{d+1}, v{t+1}, v{a+1}")

def gemm_role(A, opt):
    vWo, vXo, vXr = 2, 6, 10
    vWr = 224
    vHst, vFlag, vEp = 14, 15, 228
    vPROF, vDo = 229, 230
    FB, ACC, XF = 16, 48, 112
    TMP = 232
    vFK = 255
    P = Prof(A, opt.prof, vPROF, opt.echo)
    if 0 <= opt.dbg < 224: P.dbg = opt.dbg
    A.label("L_gemm")
    if opt.gprio: A(f"s_setprio {opt.gprio}")
    A(f"s_and_b32 s{sT0}, s{sXC}, 3\ns_lshl_b32 s{sT0}, s{sT0}, 2\ns_and_b32 s{sT1}, s{sSLOT}, 3\ns_add_u32 s{sM}, s{sT0}, s{sT1}")
    A(f"s_lshr_b32 s{sT0}, s{sXC}, 2\ns_mul_i32 s{sT0}, s{sT0}, 7\ns_add_u32 s{sJ}, s{sT0}, s{sN2}")
    if opt.rot1:
        A(f"s_and_b32 s{sT0}, s{sSLOT}, 3\ns_lshl_b32 s{sT0}, s{sT0}, 1\ns_add_u32 s{sT0}, s{sT0}, s{sN2}")
        A(f"s_sub_u32 s{sT1}, s{sT0}, 7\ns_cselect_b32 s{sT2}, s{sT0}, s{sT1}")
    else:
        A(f"s_mov_b32 s{sT2}, 0")
    A(f"s_lshl_b32 s{sXo}, s{sT2}, 7\ns_mul_i32 s{sWo}, s{sT2}, 229376")
    A(f"s_lshl_b32 s{sT0}, s{sM}, 2\ns_add_u32 s{sT0}, s{sT0}, s{sWAVE}\ns_mul_i32 s{sXb}, s{sT0}, 28672")
    A(f"s_and_b32 s{sT1}, s{sWAVE}, 1\ns_mul_i32 s{sT1}, s{sT1}, 114688\ns_lshl_b32 s{sWb}, s{sJ}, 8\ns_add_u32 s{sWb}, s{sWb}, s{sT1}")
    A("v_lshrrev_b32 v1, 3, v0")
    A("v_and_b32 v232, 7, v0")
    A("v_lshrrev_b32 v233, 1, v1")
    A("v_and_b32 v234, 1, v233\nv_lshlrev_b32 v234, 2, v234\nv_xor_b32 v234, v234, v232\nv_lshlrev_b32 v234, 4, v234")
    A(f"v_mul_u32_u24 v{vWo}, 3584, v1\nv_add_u32 v{vWo}, v{vWo}, v234")
    for q in range(1, 4): A(f"v_add_u32 v{vWo+q}, {q*27648}, v{vWo}")
    A(f"v_xor_b32 v235, v233, v232\nv_lshlrev_b32 v235, 4, v235")
    A(f"v_mul_u32_u24 v236, 896, v1")
    A(f"v_add_u32 v{vXo}, v236, v235\nv_xor_b32 v235, 64, v235\nv_add_u32 v237, v236, v235")
    A(f"v_add_u32 v{vXo+1}, 6144, v237\nv_add_u32 v{vXo+2}, 12288, v{vXo}\nv_add_u32 v{vXo+3}, 18432, v237")
    A(f"v_add_u32 v{vDo}, v236, v234\nv_add_u32 v{vDo+1}, 6144, v{vDo}")
    after_kernarg(A)
    srd(A, sX, 4, 1835008)
    A(f"s_cmp_lt_u32 s{sWAVE}, 2\ns_cselect_b32 s{sW}, s24, s26\ns_cselect_b32 s{sW+1}, s25, s27\ns_mov_b32 s{sW+2}, 1605632\ns_mov_b32 s{sW+3}, 0x20000")

    units = []
    for c in range(7): units += [("X", c), ("W", c)]
    for c in range(7): units += [("V", c)]
    tok, dtok = {}, {}
    def issue_unit(u):
        slot = u % 5
        fns = []
        if u < 21:
            kind, c = units[u]
            def pre():
                A(f"s_add_u32 m0, s{sLB}, {slot*16384}")
                if kind == "X":
                    A(f"s_add_u32 s{sT2}, s{sXb}, s{sXo}")
                    wrap_add(A, sXo, 128, 896)
                else:
                    A(f"s_add_u32 s{sT2}, s{sWb}, s{sWo}")
                    wrap_add(A, sWo, 229376, 1605632)
                    if u == 13: A(f"s_add_u32 s{sWb}, s{sWb}, 128")
            fns.append(pre)
            for q in range(4):
                def f(q=q):
                    if kind == "X": t = A.vmop(f"buffer_load_dwordx4 v{vXo+q}, s[{sX}:{sX+3}], s{sT2} offen offset:{q*1024} lds")
                    else: t = A.vmop(f"buffer_load_dwordx4 v{vWo+q}, s[{sW}:{sW+3}], s{sT2} offen offset:{q*1024} lds")
                    tok[u] = t
                fns.append(f)
        else:
            for st in (2 * (u - 21), 2 * (u - 21) + 1):
                fns += issue_wd(st)
        return fns
    def issue_wd(st):
        slot = (21 + st // 2) % 5
        def pre():
            A(f"s_add_u32 m0, s{sLB}, {slot*16384 + (st & 1)*2048}")
            A(f"s_mov_b32 s{sT2}, s{sDo}")
            wrap_add(A, sDo, 114688, 1605632)
            if st == 13: A(f"s_add_u32 s{sDo}, s{sDo}, {4*14336}")
        def f(img):
            dtok[st] = A.vmop(f"buffer_load_dwordx4 v{vDo+img}, s[{sWd}:{sWd+3}], s{sT2} offen offset:{img*1024} lds")
        return [pre, lambda: f(0), lambda: f(1)]
    def run_unit(u):
        for f in issue_unit(u): f()
    if not opt.gdelay: run_unit(0); run_unit(1)
    srd(A, sWS, 36, WS_SPAN); srd(A, sWd, 28, 1605632); srd(A, sO, 32, 1835008)
    A("v_and_b32 v232, 31, v0\nv_lshrrev_b32 v233, 5, v0")
    A("v_bfe_u32 v234, v0, 1, 3\nv_xor_b32 v234, v234, v233\nv_lshlrev_b32 v234, 4, v234")
    A(f"v_lshl_add_u32 v{vXr}, v232, 7, v234\nv_add_u32 v{vXr}, s{sLB}, v{vXr}")
    for ks in range(1, 4): A(f"v_xor_b32 v{vXr+ks}, {ks*32}, v{vXr}")
    A("v_bfe_u32 v234, v0, 2, 2")
    A("v_lshlrev_b32 v235, 10, v233\nv_lshl_add_u32 v235, v234, 7, v235")
    A("v_bfe_u32 v236, v0, 3, 1\nv_lshl_add_u32 v235, v236, 6, v235")
    A("v_bfe_u32 v236, v0, 4, 1\nv_and_b32 v237, 1, v0\nv_bfe_u32 v238, v0, 1, 1")
    A(f"v_lshl_add_u32 v239, v238, 3, v235")
    A(f"v_lshl_add_u32 v{vWr}, v236, 5, v239\nv_lshl_add_u32 v{vWr}, v237, 4, v{vWr}")
    A(f"v_xor_b32 v{vWr+1}, 64, v{vWr}\nv_add_u32 v{vWr+2}, 0x10000, v{vWr}\nv_add_u32 v{vWr+3}, 0x10000, v{vWr+1}")
    A(f"v_lshl_add_u32 v1, v237, 5, v239\nv_lshl_add_u32 v1, v236, 4, v1\nv_add_u32 v1, s{sLB}, v1")
    A(f"s_and_b32 s{sT0}, s{sWAVE}, 1\ns_lshl_b32 s{sT0}, s{sT0}, 6\nv_xor_b32 v1, s{sT0}, v1")
    A(f"v_lshlrev_b32 v{vHst}, 4, v0")
    A(f"s_lshl_b32 s{sT0}, s{sM}, 1\ns_lshr_b32 s{sT1}, s{sWAVE}, 1\ns_add_u32 s{sT0}, s{sT0}, s{sT1}\ns_mul_i32 s{sHst}, s{sT0}, 229376")
    A(f"s_and_b32 s{sT1}, s{sWAVE}, 1\ns_lshl_b32 s{sT1}, s{sT1}, 10\ns_add_u32 s{sHst}, s{sHst}, s{sT1}")
    A(f"s_lshl_b32 s{sT1}, s{sJ}, 14\ns_add_u32 s{sHst}, s{sHst}, s{sT1}\ns_add_u32 s{sHst}, s{sHst}, {WS_H}")
    A(f"v_lshrrev_b32 v232, 1, v0\nv_lshlrev_b32 v232, 12, v232\nv_and_b32 v233, 1, v0\nv_lshl_add_u32 v{vFlag}, v233, 7, v232")
    A(f"s_lshl_b32 s{sT0}, s{sM}, 8\ns_lshl_b32 s{sT1}, s{sJ}, 2\ns_add_u32 s{sT0}, s{sT0}, s{sT1}\ns_add_u32 s{sT0}, s{sT0}, {WS_F2}")
    flag_lanes(A, vFlag, sT0, 16)
    A(f"s_lshl_b32 s{sT0}, s{sN2}, 5\ns_add_u32 s{sT0}, s{sT0}, s{sM2}\ns_lshl_b32 s{sLine}, s{sT0}, 7\ns_mov_b32 s{sC8K}, 0x8000")
    if opt.rot2: A(f"s_lshl_b32 s{sT0}, s{sN2}, 4\ns_add_u32 s{sT0}, s{sT0}, s{sWAVE}")
    else: A(f"s_mov_b32 s{sT0}, s{sWAVE}")
    A(f"s_mul_i32 s{sDo}, s{sT0}, 14336\ns_lshl_b32 s{sT1}, s{sN2}, 7\ns_add_u32 s{sDo}, s{sDo}, s{sT1}\ns_lshl_b32 s{sHo}, s{sT0}, 11")
    A(f"s_mul_i32 s{sT0}, s{sM2}, 229376\ns_add_u32 s{sT0}, s{sT0}, {WS_H}\ns_add_u32 s{sH}, s36, s{sT0}\ns_addc_u32 s{sH+1}, s37, 0\ns_mov_b32 s{sH+2}, 229376\ns_mov_b32 s{sH+3}, 0x20000")
    A(f"s_mov_b32 s{sK0}, {NLOG2E}\ns_mov_b32 s{sK0+1}, {NLOG2E}")
    A(f"s_lshl_b32 s{sT0}, s{sM2}, 1\ns_lshr_b32 s{sT1}, s{sWAVE}, 1\ns_add_u32 s{sT0}, s{sT0}, s{sT1}\ns_mul_i32 s{sOut}, s{sT0}, 28672")
    A(f"s_lshl_b32 s{sT0}, s{sN2}, 1\ns_and_b32 s{sT1}, s{sWAVE}, 1\ns_add_u32 s{sT0}, s{sT0}, s{sT1}\ns_lshl_b32 s{sT0}, s{sT0}, 6\ns_add_u32 s{sOut}, s{sOut}, s{sT0}")
    if opt.gdelay: run_unit(0); run_unit(1)
    A("s_waitcnt lgkmcnt(0)")
    epoch_finish(A)
    A(f"v_mov_b32 v{vEp}, s{sEP}")
    P.stamp("setup")
    for u in (2, 3, 4): run_unit(u)
    pend = []
    st_tok = {}
    def drain(n):
        for _ in range(n):
            if pend: pend.pop(0)()
    def drain_one_dma():
        v0 = A.vm
        while pend and A.vm == v0: drain(1)

    def wu(st): return 2 * st + 1 if st < 7 else 7 + st
    ftok, xtok = {}, {}
    def rd_frag(st, i):
        ks, q = i // 4, i % 4
        mat, ft = q >> 1, q & 1
        slot = wu(st) % 5
        base = vWr + ft + (2 if slot == 4 else 0)
        off = (0 if slot == 4 else slot * 16384) + mat * 8192 + ks * 2048
        b = FB + 4 * (i % 8)
        A.lgop(f"ds_read_b64_tr_b16 v[{b}:{b+1}], v{base} offset:{off}")
        ftok[(st, i)] = A.lgop(f"ds_read_b64_tr_b16 v[{b+2}:{b+3}], v{base} offset:{off+512}")
    def rd_x(c, ks):
        slot = (2 * c) % 5
        r = XF + 16 * c + 4 * ks
        if slot == 4:
            A(f"v_add_u32 v{TMP+ks}, 0x10000, v{vXr+ks}")
            xtok[(c, ks)] = A.lgop(f"ds_read_b128 v[{r}:{r+3}], v{TMP+ks}")
        else:
            xtok[(c, ks)] = A.lgop(f"ds_read_b128 v[{r}:{r+3}], v{vXr+ks} offset:{slot*16384}")
    issued = {0, 1, 2, 3, 4}
    def free_units(upto, hold=()):
        for u in range(min(upto + 5, 25) + 1):
            if u not in issued and u not in hold:
                pend.extend(issue_unit(u)); issued.add(u)
    def barrier(st):
        drain(99)
        need = tok[wu(st)] if st < 14 else None
        if st < 7: need = max(need, tok[2 * st])
        if st == 9: need = max(need, st_tok["A"])
        A.wait_all(vm=False)
        if need is not None: A.wait(vm=need)
        A("s_barrier")
        if not opt.lightprof or st in (0, 1, 7, 8, 14) or opt.echo: P.stamp(f"B{st}")
        if st == 9: A.vmop(f"buffer_store_dword v{vEp}, v{vFlag}, s[{sWS}:{sWS+3}], 0 offen sc1")
        if st >= 1: free_units(wu(st - 1))

    def epilogue1(hf, extra=None):
        extra = extra or {}
        for ft in range(2):
            G, U = ACC + 16 * ft, ACC + 32 + 16 * ft
            for blk in range(2):
                t = TMP; o = TMP + 16 + 4 * blk
                bi = 2 * ft + blk
                def pt(ph):
                    if (bi, ph) in extra: extra[(bi, ph)]()
                if opt.epk:
                    for p in range(4): A(f"v_pk_mul_f32 v[{t+2*p}:{t+2*p+1}], v[{G+8*blk+2*p}:{G+8*blk+2*p+1}], s[{sK0}:{sK0+1}]")
                else:
                    for p in range(8): A(f"v_mul_f32 v{t+p}, s{sK0}, v{G+8*blk+p}")
                pt(0)
                for p in range(4): A(f"v_exp_f32 v{t+p}, v{t+p}")
                pt(1)
                for p in range(4, 8): A(f"v_exp_f32 v{t+p}, v{t+p}")
                pt(2)
                if opt.epk:
                    for p in range(4): A(f"v_pk_mul_f32 v[{t+8+2*p}:{t+9+2*p}], v[{G+8*blk+2*p}:{G+8*blk+2*p+1}], v[{U+8*blk+2*p}:{U+8*blk+2*p+1}]")
                    for p in range(4): A(f"v_pk_add_f32 v[{t+2*p}:{t+2*p+1}], v[{t+2*p}:{t+2*p+1}], 1.0 op_sel_hi:[1,0]")
                else:
                    for p in range(8): A(f"v_mul_f32 v{t+8+p}, v{G+8*blk+p}, v{U+8*blk+p}")
                    for p in range(8): A(f"v_add_f32 v{t+p}, 1.0, v{t+p}")
                pt(3)
                for p in range(4): A(f"v_rcp_f32 v{t+p}, v{t+p}")
                pt(4)
                for p in range(4, 8): A(f"v_rcp_f32 v{t+p}, v{t+p}")
                pt(5)
                if opt.epk:
                    for p in range(4): A(f"v_pk_mul_f32 v[{t+8+2*p}:{t+9+2*p}], v[{t+8+2*p}:{t+9+2*p}], v[{t+2*p}:{t+2*p+1}]")
                else:
                    for p in range(8): A(f"v_mul_f32 v{t+8+p}, v{t+8+p}, v{t+p}")
                for p in range(4): A(f"v_cvt_pk_bf16_f32 v{o+p}, v{t+8+2*p}, v{t+9+2*p}")
                if blk == 0: A(f"s_add_u32 s{sT2}, s{sHst}, {hf*8192 + ft*4096}")
                st_tok["AB"[hf]] = A.vmop(f"buffer_store_dwordx4 v[{o}:{o+3}], v{vHst}, s[{sWS}:{sWS+3}], s{sT2} offen offset:{blk*2048} sc1")
                pt(6)

    barrier(0)
    for ks in range(4): rd_x(0, ks)
    for i in range(6): rd_frag(0, i)
    for st in range(14):
        c = st % 7
        for i in range(16):
            ks, q = i // 4, i % 4
            need = ftok[(st, i)]
            if st < 7: need = max(need, xtok[(c, ks)])
            A.wait(lg=need)
            b = FB + 4 * (i % 8); x = XF + 16 * c + 4 * ks; a = ACC + 16 * q
            cin = "0" if (c == 0 and ks == 0) else f"v[{a}:{a+15}]"
            A(f"v_mfma_f32_32x32x16_bf16 v[{a}:{a+15}], v[{b}:{b+3}], v[{x}:{x+3}], {cin}")
            if i <= 9: rd_frag(st, i + 6)
            if i == 6 and st < 7: free_units(2 * st)
            if i == 12:
                barrier(st + 1)
                if st < 13:
                    if st + 1 < 7: rd_x(st + 1, 0)
                    rd_frag(st + 1, 0); rd_frag(st + 1, 1)
                else:
                    A(f"s_add_u32 s{sXo}, s{sLine}, {WS_F2}")
                    poll_issue(A, sXo, 14)
            elif i == 13 and st < 13:
                rd_frag(st + 1, 2); rd_frag(st + 1, 3)
                if st + 1 < 7: rd_x(st + 1, 1)
            elif i == 14 and st < 13:
                rd_frag(st + 1, 4)
                if st + 1 < 7: rd_x(st + 1, 2)
            elif i == 15 and st < 13:
                rd_frag(st + 1, 5)
                if st + 1 < 7: rd_x(st + 1, 3)
            if (st < 7 and i % 2 == 1) or (st >= 7 and i % 4 == 1) or (st in (6, 13) and i >= 13):
                drain_one_dma()
                if st == 6 and i == 15: drain(99)
        if st == 6: epilogue1(0)
    drain(99)

    HR, HD = XF, 14
    vHo, vDr = 2, 4
    AC2 = ACC
    htok = {}
    hnext = [0]
    def issue_h():
        st = hnext[0]; hnext[0] += 1
        r = HR + 8 * (st % HD)
        A.vmop(f"buffer_load_dwordx4 v[{r}:{r+3}], v{vHo}, s[{sH}:{sH+3}], s{sHo} offen sc1")
        htok[st] = A.vmop(f"buffer_load_dwordx4 v[{r+4}:{r+7}], v{vHo+1}, s[{sH}:{sH+3}], s{sHo} offen sc1")
        wrap_add(A, sHo, 16384, 229376)
        if st == 13: A(f"s_add_u32 s{sHo}, s{sHo}, 8192")
    def chk_a():
        A(f"s_lshr_b32 s{sT0}, s{sWAVE}, 1\ns_lshl_b32 s{sT0}, s{sT0}, 10")
        A(f"v_or_b32 v{vHo}, s{sT0}, v{vHst}\nv_xor_b32 v{vHo+1}, 0x400, v{vHo}")
        A(f"v_mov_b32 v{vDr}, v1\nv_xor_b32 v{vDr+1}, 64, v1\nv_add_u32 v{vDr+2}, 0x10000, v{vDr}\nv_add_u32 v{vDr+3}, 0x10000, v{vDr+1}")
        poll_check(A, sXo, 14)
        P.stamp("flagA")
        issue_h(); issue_h()
    extra = {(1, 2): chk_a}
    pts = [(1, 4), (1, 6), (2, 1), (2, 3), (2, 5), (3, 0), (3, 2), (3, 4), (2, 0), (2, 2), (2, 4), (3, 1)]
    for p_ in pts[:max(opt.npre - 2, 0)]: extra[p_] = issue_h
    epilogue1(1, extra)
    P.stamp("epiB")
    wtok = {}
    def rd_wd(st):
        if st >= 28 or (st, 0) in wtok: return
        A.wait(vm=dtok[st])
        slot = (21 + st // 2) % 5
        off = (0 if slot == 4 else slot * 16384) + (st & 1) * 2048
        for dt in range(2):
            base = vDr + dt + (2 if slot == 4 else 0)
            b = FB + 8 * (st % 4) + 4 * dt
            A.lgop(f"ds_read_b64_tr_b16 v[{b}:{b+1}], v{base} offset:{off}")
            wtok[(st, dt)] = A.lgop(f"ds_read_b64_tr_b16 v[{b+2}:{b+3}], v{base} offset:{off+512}")
    rd_wd(0)
    ATS = (21 + 9) % 5
    RS = [(21 + 10) % 5, (21 + 11) % 5, (21 + 12) % 5]
    assert opt.polly >= 20 and 4 not in RS + [ATS]
    vG = TMP + 2
    skipy = opt.nossm or opt.stop
    for st in range(28):
        if st == opt.flagstep:
            A.wait(vm=st_tok["B"])
            A("s_barrier")
            A.vmop(f"buffer_store_dword v{vEp}, v{vFlag}, s[{sWS}:{sWS+3}], s{sC8K} offen sc1")
        if st == opt.pollb:
            poll_check(A, sXo, 14)
            P.stamp("flagB")
        if st == opt.polly:
            if not skipy: poll_check(A, sXo, 32)
            P.stamp("flagY")
            A(f"s_lshl_b32 s{sT0}, s{sN2}, 2\ns_add_u32 s{sT0}, s{sT0}, s{sWAVE}\ns_lshl_b32 s{sT0}, s{sT0}, 16\ns_lshl_b32 s{sT1}, s{sM2}, 7\ns_add_u32 s{sT0}, s{sT0}, s{sT1}\ns_add_u32 s{sT2}, s{sT0}, {WS_AT}")
            A(f"s_add_u32 m0, s{sLB}, {ATS*16384}")
            A.vmop(f"buffer_load_dwordx4 v{TMP}, s[{sWS}:{sWS+3}], s{sT2} offen sc1 lds")
            A.vmop(f"buffer_load_dwordx4 v{TMP+1}, s[{sWS}:{sWS+3}], s{sT2} offen offset:1024 sc1 lds")
            A.vmop(f"buffer_load_dwordx2 v[{vG}:{vG+1}], v{TMP+4}, s[{sWS}:{sWS+3}], s{sWo} offen sc1")
        lim = min(st + opt.pdh, 27, st + HD - 1)
        if st < opt.pollb: lim = min(lim, 13)
        for _ in range(2):
            if hnext[0] <= lim: issue_h()
        A.wait(vm=htok[st])
        rd_wd(st + 1)
        if st + 2 in (opt.pollb, opt.polly):
            rd_wd(st + 2)
            A.wait_all(vm=False)
            if st + 2 == opt.pollb:
                A(f"s_add_u32 s{sXo}, s{sXo}, 0x8000"); poll_issue(A, sXo, 14)
            elif not skipy:
                A(f"s_add_u32 s{sXo}, s{sLine}, {WS_F3}"); poll_issue(A, sXo, 32)
        r = HR + 8 * (st % HD)
        for dt in range(2):
            A.wait(lg=wtok[(st, dt)])
            for tt in range(2):
                a = AC2 + 16 * (dt + 2 * tt); b = FB + 8 * (st % 4) + 4 * dt
                cin = "0" if st == 0 else f"v[{a}:{a+15}]"
                A(f"v_mfma_f32_32x32x16_bf16 v[{a}:{a+15}], v[{b}:{b+3}], v[{r+4*tt}:{r+4*tt+3}], {cin}")
        if st + 10 < 28:
            for f in issue_wd(st + 10): f()
        if st == 18:
            A(f"v_lshrrev_b32 v{TMP}, 3, v0\nv_lshlrev_b32 v{TMP}, 12, v{TMP}\nv_and_b32 v{TMP+1}, 7, v0\nv_lshl_add_u32 v{TMP}, v{TMP+1}, 4, v{TMP}")
            A(f"v_add_u32 v{TMP+1}, {32768-1024}, v{TMP}")
            A(f"v_and_b32 v{TMP+4}, 31, v0\nv_mul_u32_u24 v{TMP+10}, 896, v{TMP+4}\nv_lshlrev_b32 v{TMP+4}, 3, v{TMP+4}")
            A(f"s_lshl_b32 s{sT0}, s{sM2}, 1\ns_lshr_b32 s{sT1}, s{sWAVE}, 1\ns_add_u32 s{sT0}, s{sT0}, s{sT1}\ns_lshl_b32 s{sWo}, s{sT0}, 8\ns_add_u32 s{sWo}, s{sWo}, {WS_GATE}")
            A(f"v_add_u32 v{TMP+5}, s{sLB}, v{vHst}")
            for a in range(1, 4): A(f"v_xor_b32 v{TMP+5+a}, {a << 12}, v{TMP+5}")
        if st == 19:
            A(f"v_lshrrev_b32 v{TMP+11}, 5, v0\nv_lshl_add_u32 v{TMP+10}, v{TMP+11}, 5, v{TMP+10}")
            A(f"v_lshlrev_b32 v{TMP+9}, 12, v{TMP+11}\nv_bfe_u32 v{TMP+11}, v0, 2, 2\nv_lshl_add_u32 v{TMP+9}, v{TMP+11}, 7, v{TMP+9}")
            A(f"v_bfe_u32 v{TMP+11}, v0, 4, 1\nv_lshl_add_u32 v{TMP+9}, v{TMP+11}, 5, v{TMP+9}\nv_and_b32 v{TMP+11}, 3, v0\nv_lshl_add_u32 v{TMP+9}, v{TMP+11}, 3, v{TMP+9}")
            A(f"s_and_b32 s{sT0}, s{sWAVE}, 1\ns_lshl_b32 s{sT0}, s{sT0}, 13\ns_lshr_b32 s{sT1}, s{sWAVE}, 1\ns_lshl_b32 s{sT1}, s{sT1}, 6\ns_add_u32 s{sT0}, s{sT0}, s{sT1}")
            A(f"v_add_u32 v{TMP+9}, s{sT0}, v{TMP+9}")
    P.stamp("g2loop")
    for a in (2, 1, 3):
        for k in range(4):
            r = AC2 + 16 * a + 4 * k
            A.lgop(f"ds_write_b128 v{TMP+5}, v[{r}:{r+3}] offset:{RS[a-1]*16384 + k*1024}")
    A.wait_all()
    A("s_barrier")
    PR = XF
    rt = []
    for a in range(1, 4):
        for k in range(4):
            r = PR + 16 * (a - 1) + 4 * k
            t = A.lgop(f"ds_read_b128 v[{r}:{r+3}], v{TMP+5+a} offset:{RS[a-1]*16384 + k*1024}")
        rt.append(t)
    top, ok = uid("gt"), uid("go")
    A(f"s_mov_b32 s{sSPIN}, 0")
    A.label(top)
    A(f"v_cmp_ne_u32 vcc, s{sEP}, v{vG+1}")
    A(f"s_cbranch_vccz {ok}")
    A(f"s_add_u32 s{sSPIN}, s{sSPIN}, 1\ns_cmp_ge_u32 s{sSPIN}, {SPIN_MAX}\ns_cbranch_scc1 {ok}")
    A(f"buffer_load_dwordx2 v[{vG}:{vG+1}], v{TMP+4}, s[{sWS}:{sWS+3}], s{sWo} offen sc1")
    A("s_waitcnt vmcnt(0)")
    A(f"s_branch {top}")
    A.label(ok)
    A.wait(lg=rt[0])
    AT = FB
    for e in range(4):
        at = A.lgop(f"ds_read_b64_tr_b16 v[{AT+2*e}:{AT+2*e+1}], v{TMP+9} offset:{ATS*16384 + e*512}")
    A(f"v_lshlrev_b32 v{TMP+12}, 16, v{vG}\nv_and_b32 v{TMP+14}, 0xffff0000, v{vG}")
    for a in range(3):
        if a: A.wait(lg=rt[a])
        for p in range(8):
            A(f"v_pk_add_f32 v[{AC2+2*p}:{AC2+2*p+1}], v[{AC2+2*p}:{AC2+2*p+1}], v[{PR+16*a+2*p}:{PR+16*a+2*p+1}]")
    A.wait(lg=at)
    for h in range(2):
        for p in range(4 * h, 4 * h + 4):
            A(f"v_lshlrev_b32 v{PR+2*p}, 16, v{AT+p}\nv_and_b32 v{PR+2*p+1}, 0xffff0000, v{AT+p}")
            A(f"v_pk_mul_f32 v[{AC2+2*p}:{AC2+2*p+1}], v[{AC2+2*p}:{AC2+2*p+1}], v[{TMP+14}:{TMP+15}] op_sel_hi:[1,0]")
        for p in range(4 * h, 4 * h + 4):
            A(f"v_pk_fma_f32 v[{AC2+2*p}:{AC2+2*p+1}], v[{PR+2*p}:{PR+2*p+1}], v[{TMP+12}:{TMP+13}], v[{AC2+2*p}:{AC2+2*p+1}] op_sel_hi:[1,0,1]")
        for p in range(4 * h, 4 * h + 4):
            A(f"v_cvt_pk_bf16_f32 v{AT+8+p}, v{AC2+2*p}, v{AC2+2*p+1}")
        A(f"buffer_store_dwordx4 v[{AT+8+4*h}:{AT+11+4*h}], v{TMP+10}, s[{sO}:{sO+3}], s{sOut} offen offset:{16*h}")
    P.stamp("end")
    P.flush(TMP)
    A("s_endpgm")
    return P.names

def ssm_role(A, opt):
    UBASE, KBASE, PIECE, PHOP, CP = 0, 33280, 0, 8192, 4160
    vPROF = 255
    P = Prof(A, opt.prof, vPROF)
    if opt.dbg >= 256: P.dbg = opt.dbg
    fine = P.stamp if opt.fine else (lambda n: None)
    sCH, sHW, sD, sUB, sKB, sF1, sRND = sM, sJ, sXo, sWo, sDo, sHo, sWb
    vF1, vF3, vEp, vL16 = 14, 15, 5, 4
    RAW, KA = 56, 64
    A.label("L_ssm")
    if opt.nossm: A("s_endpgm")
    if opt.kprio: A(f"s_setprio {opt.kprio}")
    A(f"s_sub_u32 s{sP}, s2, 256")
    A(f"s_lshl_b32 s{sT0}, s{sP}, 10\ns_lshl_b32 s{sT1}, s{sWAVE}, 8\ns_add_u32 s{sT0}, s{sT0}, s{sT1}\nv_lshl_add_u32 v62, v0, 2, s{sT0}")
    A(f"s_lshr_b32 s{sCH}, s{sWAVE}, 1\ns_and_b32 s{sHW}, s{sWAVE}, 1")
    A(f"s_lshl_b32 s{sD}, s{sP}, 1\ns_add_u32 s{sD}, s{sD}, s{sCH}")
    A("v_lshrrev_b32 v1, 3, v0\nv_mul_u32_u24 v2, 896, v1\nv_and_b32 v13, 7, v0\nv_lshl_add_u32 v2, v13, 4, v2\nv_add_u32 v3, 6144, v2")
    A(f"s_lshl_b32 s{sT0}, s{sM2}, 2\ns_add_u32 s{sT0}, s{sT0}, s{sWAVE}\ns_mul_i32 s{sT2}, s{sT0}, 14336\ns_lshl_b32 s{sT1}, s{sN2}, 7\ns_add_u32 s{sT2}, s{sT2}, s{sT1}")
    A(f"s_lshl_b32 s{sT0}, s{sWAVE}, 11\ns_add_u32 m0, s{sT0}, {PIECE}")
    SEL = 240
    A("v_and_b32 v16, 31, v0\nv_lshrrev_b32 v17, 5, v0\nv_lshlrev_b32 v17, 3, v17\nv_sub_u32 v16, v16, v17")
    A("v_and_b32 v17, 1, v0\nv_lshlrev_b32 v17, 4, v17\nv_mov_b32 v18, 0x3c00\nv_lshlrev_b32 v17, v17, v18\nv_ashrrev_i32 v16, 1, v16")
    for h in range(2):
        for i in range(4):
            A(f"v_cmp_eq_u32 vcc, {8*h + i}, v16\nv_cndmask_b32 v{SEL+4*h+i}, 0, v17, vcc")
    A("v_lshrrev_b32 v232, 4, v0\nv_bfe_u32 v233, v0, 2, 2\nv_and_b32 v234, 3, v0\nv_and_b32 v235, 15, v0")
    A(f"v_lshlrev_b32 v248, 10, v232\nv_lshl_add_u32 v248, v233, 7, v248\nv_lshl_add_u32 v248, v234, 3, v248")
    after_kernarg(A)
    for k in range(6):
        rtok = A.vmop(f"global_load_dword v{RAW+k}, v62, s[{6+2*k}:{7+2*k}]")
    A(f"s_lshl_b32 s{sT0}, s{sP}, 2")
    A(f"s_load_dword s{sDT}, s[18:19], s{sT0}\ns_load_dword s{sDS}, s[20:21], s{sT0}")
    srd(A, sX, 4, 1835008)
    A.vmop(f"buffer_load_dwordx4 v2, s[{sX}:{sX+3}], s{sT2} offen lds")
    ptok = A.vmop(f"buffer_load_dwordx4 v3, s[{sX}:{sX+3}], s{sT2} offen offset:1024 lds")
    srd(A, sWS, 36, WS_SPAN)
    A(f"s_lshl_b32 s{sT0}, s{sWAVE}, 5\ns_add_u32 s{sT0}, s{sT0}, {PIECE}\nv_add_u32 v248, s{sT0}, v248")
    A(f"s_add_u32 s{sT0}, s{sLB}, {PHOP}")
    A(f"v_mul_u32_u24 v249, 144, v235\nv_lshl_add_u32 v249, v232, 4, v249\nv_add_u32 v249, s{sT0}, v249")
    A(f"v_mul_u32_u24 v250, 144, v1\nv_lshl_add_u32 v250, v13, 4, v250\nv_add_u32 v250, s{sT0}, v250")
    A("v_lshlrev_b32 v251, 12, v1\nv_lshl_add_u32 v251, v13, 4, v251")
    A(f"s_lshl_b32 s{sT0}, s{sN2}, 2\ns_add_u32 s{sT0}, s{sT0}, s{sWAVE}\ns_lshl_b32 s{sT0}, s{sT0}, 16\ns_lshl_b32 s{sT1}, s{sM2}, 7\ns_add_u32 s{sT0}, s{sT0}, s{sT1}\ns_add_u32 s{sHst}, s{sT0}, {WS_UT}\ns_add_u32 s{sXb}, s{sHst}, 0x8000")
    A(f"v_lshlrev_b32 v{vF1}, 7, v0\nv_lshlrev_b32 v{vF3}, 7, v0")
    A(f"s_lshl_b32 s{sT0}, s{sN2}, 12\ns_lshl_b32 s{sT1}, s{sM2}, 2\ns_add_u32 s{sT0}, s{sT0}, s{sT1}\ns_add_u32 s{sT0}, s{sT0}, {WS_F1}")
    flag_lanes(A, vF1, sT0, 32)
    A(f"s_lshr_b32 s{sT0}, s{sP}, 5\ns_lshl_b32 s{sT0}, s{sT0}, 12\ns_and_b32 s{sT1}, s{sP}, 31\ns_lshl_b32 s{sT1}, s{sT1}, 2\ns_add_u32 s{sT0}, s{sT0}, s{sT1}\ns_add_u32 s{sT0}, s{sT0}, {WS_F3}")
    flag_lanes(A, vF3, sT0, 32)
    A(f"s_mul_i32 s{sUB}, s{sCH}, 16640\ns_add_u32 s{sUB}, s{sUB}, {UBASE}\ns_mul_i32 s{sKB}, s{sCH}, 4608\ns_add_u32 s{sKB}, s{sKB}, {KBASE}")
    A(f"s_lshl_b32 s{sF1}, s{sP}, 7\ns_add_u32 s{sF1}, s{sF1}, {WS_F1}")
    vU, vK, vXO, vXP, vUC, vST, vUE = 6, 7, 8, 9, 10, 11, 12
    A(f"v_lshlrev_b32 v{vL16}, 4, v0")
    A("v_lshrrev_b32 v224, 5, v0\nv_bfe_u32 v225, v0, 4, 1\nv_lshlrev_b32 v225, 4, v225")
    A(f"v_mul_u32_u24 v{vU}, {CP}, v233\nv_lshl_add_u32 v{vU}, v224, 5, v{vU}\nv_lshl_add_u32 v{vU}, v234, 3, v{vU}\nv_sub_u32 v{vU}, v{vU}, v225")
    A(f"s_lshl_b32 s{sT0}, s{sHW}, 8\ns_add_u32 s{sT1}, s{sUB}, s{sT0}\ns_add_u32 s{sT1}, s{sT1}, 24\nv_add_u32 v{vU}, s{sT1}, v{vU}")
    A(f"v_sub_u32 v226, v235, v224\nv_lshlrev_b32 v226, 5, v226\nv_add_u32 v{vK}, v226, v225")
    A(f"s_sub_u32 s{sT1}, s{sKB}, s{sT0}\ns_add_u32 s{sT1}, s{sT1}, {512-192}\nv_add_u32 v{vK}, s{sT1}, v{vK}")
    A(f"s_add_u32 s{sT0}, s{sLB}, {KBUF}\nv_add_u32 v{vXO}, s{sT0}, v{vL16}\nv_xor_b32 v{vXP}, 0x1000, v{vXO}")
    A(f"v_lshlrev_b32 v{vST}, 5, v235\nv_lshl_add_u32 v{vST}, v232, 3, v{vST}")
    A(f"s_lshl_b32 s{sT1}, s{sHW}, 11\ns_add_u32 s{sT1}, s{sT1}, s{sUB}\nv_add_u32 v{vUC}, s{sT1}, v{vL16}\nv_add_u32 v{vUE}, s{sT1}, v{vST}")
    A(f"s_add_u32 s{sT0}, s{sT0}, 16384\nv_add_u32 v{vST}, s{sT0}, v{vST}")
    for r_ in range(16): A(f"v_mov_b32 v{KA+r_}, 0")
    A("s_waitcnt lgkmcnt(0)")
    epoch_finish(A)
    A(f"v_mov_b32 v{vEp}, s{sEP}")
    A(f"s_lshl_b32 s{sT0}, s{sCH}, 4\ns_lshr_b32 s{sDS}, s{sDS}, s{sT0}\ns_lshl_b32 s{sDS}, s{sDS}, 16\ns_lshr_b32 s{sDT}, s{sDT}, s{sT0}\ns_lshl_b32 s{sDT}, s{sDT}, 16")
    A(f"v_mov_b32 v41, {LOG2E}\nv_mov_b32 v45, s{sDT}\nv_mul_f32 v42, v45, v41\nv_fma_f32 v43, v45, v41, -v42")
    A("v_fmac_f32 v43, 0x32a57060, v45")
    A("v_exp_f32 v42, v42\nv_mul_f32 v43, 0x3f317218, v43")
    A("v_fma_f32 v42, v42, v43, v42\nv_cvt_pk_bf16_f32 v42, v42, v42\nv_lshlrev_b32 v63, 16, v42")
    A("v_mul_f32 v43, v63, v41\nv_mul_f32 v44, 0.15915494, v63")
    A(f"v_readfirstlane_b32 s{sCA}, v43\nv_readfirstlane_b32 s{sCB}, v44")
    P.stamp("setup")
    A.wait(vm=rtok)
    P.stamp("params")
    if opt.stop == 1: A("s_endpgm")
    for k in range(4): A(f"v_lshlrev_b32 v{20+k}, 16, v{RAW+2+k}\nv_and_b32 v{24+k}, 0xffff0000, v{RAW+2+k}")
    cmul(A, 16, 22, 20, 28)
    cmul(A, 18, 26, 24, 30)
    A("v_max3_f32 v20, abs(v16), abs(v17), abs(v18)\nv_max_f32 v20, abs(v19), v20")
    for m in ("row_shr:1 row_mask:0xf", "row_shr:2 row_mask:0xf", "row_shr:4 row_mask:0xf", "row_shr:8 row_mask:0xf", "row_bcast:15 row_mask:0xa", "row_bcast:31 row_mask:0xc"):
        A(f"v_max_f32_dpp v20, v20, v20 {m} bank_mask:0xf")
    A(f"v_readlane_b32 s{sT0}, v20, 63")
    A(f"s_lshr_b32 s{sT0}, s{sT0}, 23\ns_max_u32 s{sT0}, s{sT0}, 8\ns_sub_u32 s{sT1}, 258, s{sT0}\ns_lshl_b32 s{sT1}, s{sT1}, 23")
    A(f"s_sub_u32 s{sT0}, s{sT0}, 4\ns_lshl_b32 s{sT0}, s{sT0}, 23")
    for k in range(4): A(f"v_mul_f32 v{16+k}, s{sT1}, v{16+k}")
    A(f"v_mul_f32 v63, s{sT0}, v63\nv_readfirstlane_b32 s{sUN}, v63")
    A(f"s_mov_b32 s{sRND}, 0")
    def first_round_only(fn):
        l = uid("fr")
        A(f"s_cmp_lg_u32 s{sRND}, 0\ns_cbranch_scc1 {l}")
        fn()
        A.label(l)
    PCR = 144
    def h1():
        A("s_waitcnt vmcnt(0)\ns_barrier")
        for e in range(2):
            A(f"ds_read_b64_tr_b16 v[{PCR+4*e}:{PCR+1+4*e}], v248 offset:{e*4096}")
            A(f"ds_read_b64_tr_b16 v[{PCR+2+4*e}:{PCR+3+4*e}], v248 offset:{e*4096+512}")
    def h2():
        A("s_waitcnt lgkmcnt(0)")
        for e in range(2): A(f"ds_write_b128 v249, v[{PCR+4*e}:{PCR+3+4*e}] offset:{64*e}")
        for e in range(2): A(f"ds_read_b128 v[{PCR+8+4*e}:{PCR+11+4*e}], v250 offset:{1152*e}")
    def h3():
        A("s_waitcnt lgkmcnt(0)")
        A(f"buffer_store_dwordx4 v[{PCR+8}:{PCR+11}], v251, s[{sWS}:{sWS+3}], s{sHst} offen sc1")
        A(f"buffer_store_dwordx4 v[{PCR+12}:{PCR+15}], v251, s[{sWS}:{sWS+3}], s{sXb} offen sc1")
    R0, R1, QF, PF, S0, S1, D0 = 80, 96, 112, 144, 176, 192, 208
    W, EA, EB, T, TR, TI = 16, 32, 34, 36, 38, 39
    F = {1: 40, 4: 41, 16: 42, 32: 43, 64: 44, 128: 45, 256: 46, 512: 47, 1024: 48}
    E2w, E8w = 50, 52
    A.label("L_kround")
    fine("r_top")
    A(f"v_lshlrev_b32 v20, 16, v{RAW}\nv_lshlrev_b32 v21, 16, v{RAW+1}\nv_lshrrev_b32 v{RAW}, 16, v{RAW}\nv_lshrrev_b32 v{RAW+1}, 16, v{RAW+1}")
    A(f"v_mul_f32 v20, s{sCA}, v20\nv_mul_f32 v21, s{sCB}, v21")
    A("v_mul_f32 v22, 0x42000000, v20\nv_mul_f32 v23, 0x42000000, v21")
    A("v_exp_f32 v20, v20\nv_fract_f32 v21, v21\nv_exp_f32 v22, v22\nv_fract_f32 v23, v23")
    A(f"v_cos_f32 v{EA}, v21\nv_sin_f32 v{EA+1}, v21\nv_cos_f32 v{EB}, v23\nv_sin_f32 v{EB+1}, v23")
    A(f"v_mul_f32 v{EA}, v{EA}, v20\nv_mul_f32 v{EA+1}, v{EA+1}, v20\nv_mul_f32 v{EB}, v{EB}, v22\nv_mul_f32 v{EB+1}, v{EB+1}, v22")
    cv = lambda l, e: A(f"v_cvt_pk_f16_f32 v{F[l]}, v{e}, v{e+1}")
    cv(1, EA); cv(32, EB)
    csq(A, EA, EA, T); cmul(A, E2w, W, EA, T)
    csq(A, EB, EB, T); cv(64, EB)
    csq(A, EA, EA, T); cv(4, EA)
    csq(A, EB, EB, T); cv(128, EB)
    first_round_only(h1)
    csq(A, EA, EA, T); cmul(A, E8w, W, EA, T)
    A(f"v_cvt_pk_f16_f32 v{R0}, 1.0, v{EA}\nv_cvt_pk_f16_f32 v{R1}, 0, -v{EA+1}")
    for l in (256, 512, 1024):
        csq(A, EB, EB, T); cv(l, EB)
    csq(A, EA, EA, T); cv(16, EA)
    A(f"v_cvt_pk_f16_f32 v{S0}, v{W}, v{E2w}\nv_cvt_pk_f16_f32 v{S1}, v{W+1}, v{E2w+1}")
    A(f"v_cvt_pk_f16_f32 v{TR}, v{W}, v{E8w}\nv_cvt_pk_f16_f32 v{TI}, v{W+1}, v{E8w+1}")
    A("v_mov_b32 v16, v18\nv_mov_b32 v17, v19")
    first_round_only(h2)
    fine("r_fac")
    hm = lambda d, sr, si, l: hmul(A, S0 + d, S1 + d, sr, si, F[l])
    hp = lambda d, sidx, l: hm(d, S0 + sidx, S1 + sidx, l)
    hp(1, 0, 1); hp(2, 0, 4); hp(3, 1, 4)
    hp(4, 0, 256); hp(6, 2, 256); hm(7, TR, TI, 256)
    A(f"v_alignbit_b32 v{S0+5}, v{S0+6}, v{S0+6}, 16\nv_alignbit_b32 v{S1+5}, v{S1+6}, v{S1+6}, 16")
    hm(8, TR, TI, 512); hp(9, 2, 512)
    first_round_only(h3)
    hp(10, 7, 512); hp(11, 6, 512)
    hm(12, TR, TI, 1024); hp(13, 7, 1024); hp(14, 8, 1024); hp(15, 10, 1024)
    fine("r_p")
    def swaps(pl): return [f"v_permlane32_swap_b32 v{pl+8*kh+i}, v{pl+8*kh+4+i}" for kh in range(2) for i in range(4)]
    def tmf(d, pl, nh):
        return [f"v_mfma_f32_32x32x16_f16 v[{d}:{d+15}], v[{pl+4*nh}:{pl+4*nh+3}], v[{SEL}:{SEL+3}], 0",
                f"v_mfma_f32_32x32x16_f16 v[{d}:{d+15}], v[{pl+8+4*nh}:{pl+8+4*nh+3}], v[{SEL+4}:{SEL+7}], v[{d}:{d+15}]"]
    def cvts(dst, d): return [f"v_cvt_pk_f16_f32 v{dst+i}, v{d+2*i}, v{d+2*i+1}" for i in range(8)]
    B = Asm()
    n = 1
    for l in (16, 32, 64, 128):
        for i in range(n): hmul(B, R0 + n + i, R1 + n + i, R0 + i, R1 + i, F[l], conj=True)
        n *= 2
    qv = B.lines
    def weave(valu, mf, gap, lead=0):
        valu = list(valu); mf = list(mf)
        for _ in range(lead): A(valu.pop(0))
        while valu or mf:
            if mf: A(mf.pop(0))
            for _ in range(gap):
                if valu: A(valu.pop(0))
    PD = [D0, D0 + 16, QF, QF + 16]
    QD = [D0, D0 + 16, S0, S1]
    fin = lambda i: f"v_mfma_f32_32x32x16_f16 v[{KA}:{KA+15}], v[{PF+4*i}:{PF+4*i+3}], v[{QF+4*i}:{QF+4*i+3}], v[{KA}:{KA+15}]"
    if opt.vfirst:
        for x in qv + swaps(S0) + swaps(S1) + swaps(R0) + swaps(R1): A(x)
        fine("r_q")
        for x in tmf(PD[0], S0, 0) + tmf(PD[1], S0, 1): A(x)
        weave(cvts(PF, PD[0]) + cvts(PF + 8, PD[1]), tmf(PD[2], S1, 0) + tmf(PD[3], S1, 1), 4)
        weave(cvts(PF + 16, PD[2]) + cvts(PF + 24, PD[3]), tmf(QD[0], R0, 0) + tmf(QD[1], R0, 1), 4)
        weave(cvts(QF, QD[0]) + cvts(QF + 8, QD[1]), tmf(QD[2], R1, 0) + tmf(QD[3], R1, 1), 4)
        weave(cvts(QF + 16, QD[2]) + cvts(QF + 24, QD[3]), [fin(0), fin(1), fin(2), fin(3)], 4)
    else:
        for x in swaps(S0): A(x)
        weave(swaps(S1) + qv, tmf(PD[0], S0, 0) + tmf(PD[1], S0, 1) + tmf(PD[2], S1, 0) + tmf(PD[3], S1, 1), 6, lead=2)
        fine("r_q")
        for x in cvts(PF, PD[0]) + cvts(PF + 8, PD[1]) + swaps(R0): A(x)
        weave(swaps(R1) + cvts(PF + 16, PD[2]) + cvts(PF + 24, PD[3]), tmf(QD[0], R0, 0) + tmf(QD[1], R0, 1), 6, lead=2)
        fin = lambda i: f"v_mfma_f32_32x32x16_f16 v[{KA}:{KA+15}], v[{PF+4*i}:{PF+4*i+3}], v[{QF+4*i}:{QF+4*i+3}], v[{KA}:{KA+15}]"
        weave(cvts(QF, QD[0]) + cvts(QF + 8, QD[1]), tmf(QD[2], R1, 0) + tmf(QD[3], R1, 1), 4)
        weave(cvts(QF + 16, QD[2]) + cvts(QF + 24, QD[3]), [fin(0), fin(1), fin(2), fin(3)], 4)
    for i in range(4, 8): A(fin(i))
    fine("r_mfma")
    A(f"s_cmp_eq_u32 s{sRND}, 1\ns_cbranch_scc1 L_kdone")
    A(f"s_mov_b32 s{sRND}, 1")
    A("s_waitcnt vmcnt(0)\ns_barrier")
    A(f"buffer_store_dword v{vEp}, v{vF1}, s[{sWS}:{sWS+3}], 0 offen sc1")
    if opt.stop == 2: A("s_endpgm")
    if opt.kprio2 >= 0: A(f"s_setprio {opt.kprio2}")
    A("s_branch L_kround")
    A.label("L_kdone")
    P.stamp("kgen")
    if opt.stop == 4: A("s_endpgm")
    if opt.cprio != opt.kprio: A(f"s_setprio {opt.cprio}")
    poll_issue(A, sF1, 32)
    for k in range(2): A(f"v_add_u32 v{20+k}, {2*CP + 36 + k*1024}, v{vUC}\nv_add_u32 v{22+k}, {3*CP + 36 + k*1024}, v{vUC}")
    A(f"v_and_b32 v16, 31, v0\nv_lshlrev_b32 v16, 4, v16\nv_add_u32 v16, s{sKB}, v16\nv_lshrrev_b32 v17, 5, v0")
    A("v_lshl_add_u32 v18, v17, 3, v16\nv_lshl_add_u32 v19, v17, 9, v16\nv_lshl_add_u32 v16, v17, 10, v16")
    A("v_and_b32 v17, 1, v0\nv_cmp_eq_u32 vcc, 1, v17")
    A("s_nop 7")
    for r_ in range(16): A(f"v_mul_f32 v{KA+r_}, s{sUN}, v{KA+r_}")
    A(f"s_cmp_eq_u32 s{sHW}, 0\ns_cbranch_scc1 L_even0")
    for k in range(2): A(f"ds_write_b128 v{vXO}, v[{KA+4*k}:{KA+4*k+3}] offset:{k*1024}")
    A(f"v_lshlrev_b32 v56, 3, v0\nv_add_u32 v56, s{sKB}, v56\nv_mov_b32 v58, 0\nv_mov_b32 v59, 0\nds_write_b64 v56, v[58:59]")
    for r_ in range(8): A(f"v_mov_b32 v{32+r_}, v{KA+8+r_}")
    A("s_branch L_join0")
    A.label("L_even0")
    for k in range(2): A(f"ds_write_b128 v{vXO}, v[{KA+8+4*k}:{KA+8+4*k+3}] offset:{k*1024}")
    A(f"v_lshrrev_b32 v56, 4, v0\nv_mul_u32_u24 v56, {CP}, v56\nv_and_b32 v57, 15, v0\nv_lshl_add_u32 v56, v57, 2, v56\nv_add_u32 v56, s{sUB}, v56\nv_mov_b32 v57, 0")
    A("ds_write_b32 v56, v57")
    for r_ in range(8): A(f"v_mov_b32 v{32+r_}, v{KA+r_}")
    A.label("L_join0")
    poll_check(A, sF1, 32, slp=opt.slp)
    P.stamp("flagU")
    UR = 176
    A(f"s_lshl_b32 s{sT2}, s{sD}, 12\ns_lshl_b32 s{sT0}, s{sHW}, 11\ns_add_u32 s{sT2}, s{sT2}, s{sT0}\ns_add_u32 s{sT2}, s{sT2}, {WS_UT}")
    for k in range(2): A(f"buffer_load_dwordx4 v[{UR+4*k}:{UR+4*k+3}], v{vL16}, s[{sWS}:{sWS+3}], s{sT2} offen offset:{k*1024} sc1")
    A(f"s_cmp_eq_u32 s{sHW}, 0\ns_cselect_b32 s{sT0}, 2.0, 0\nv_mov_b32 v40, 2.0\nv_writelane_b32 v40, s{sT0}, 0\ns_sub_u32 s{sT3}, s{sT2}, 4")
    A(f"buffer_load_dword v{UR+8}, v40, s[{sWS}:{sWS+3}], s{sT3} offen sc1")
    A("s_barrier")
    for k in range(2): A(f"ds_read_b128 v[{24+4*k}:{27+4*k}], v{vXP} offset:{k*1024}")
    A("s_waitcnt lgkmcnt(0)")
    for i in range(8): A(f"v_add_f32 v{24+i}, v{24+i}, v{32+i}")
    r = lambda i: f"v{24+i}"
    O = 60
    A(f"s_cmp_eq_u32 s{sHW}, 0\ns_cbranch_scc1 L_even1")
    A(f"v_cvt_pk_bf16_f32 v{O}, {r(0)}, {r(0)}\nv_cvt_pk_bf16_f32 v{O+1}, {r(0)}, {r(2)}\nv_cvt_pk_bf16_f32 v{O+2}, {r(2)}, {r(2)}\nv_cvt_pk_bf16_f32 v{O+3}, {r(1)}, {r(1)}")
    A(f"ds_write_b128 v19, v[{O}:{O+3}] offset:1536")
    for e in range(2):
        a0, a8, o = 4 + 2 * e, 5 + 2 * e, O + 4 + 4 * e
        A(f"v_cndmask_b32 v17, {r(a0)}, {r(a8)}, vcc")
        A(f"v_cvt_pk_bf16_f32 v{o}, {r(a0)}, {r(a0)}\nv_cvt_pk_bf16_f32 v{o+2}, v17, {r(a8)}\nv_cvt_pk_bf16_f32 v{o+3}, {r(a8)}, {r(a8)}\nv_mov_b32 v{o+1}, v{o}")
        A(f"ds_write_b128 v16, v[{o}:{o+3}] offset:{2560 + 512*e}")
    A("s_branch L_join1")
    A.label("L_even1")
    A(f"v_cvt_pk_bf16_f32 v{O}, {r(0)}, {r(2)}\nv_cvt_pk_bf16_f32 v{O+1}, {r(1)}, {r(3)}\nv_cvt_pk_bf16_f32 v{O+2}, {r(4)}, {r(4)}\nv_cvt_pk_bf16_f32 v{O+3}, {r(5)}, {r(7)}")
    A(f"ds_write_b64 v18, v[{O}:{O+1}] offset:512\nds_write_b64 v18, v[{O+2}:{O+3}] offset:1024")
    A.label("L_join1")
    A("s_waitcnt vmcnt(0)")
    A(f"v_readlane_b32 s{sT0}, v{UR+3}, 63")
    A(f"v_mov_b32_dpp v{UR+8}, v{UR+3} wave_shr:1 row_mask:0xf bank_mask:0xf")
    A(f"v_mov_b32 v{UR+9}, s{sT0}")
    A(f"v_mov_b32_dpp v{UR+9}, v{UR+7} wave_shr:1 row_mask:0xf bank_mask:0xf")
    OD = 188
    for k in range(2):
        A(f"ds_write_b128 v{vUC}, v[{UR+4*k}:{UR+4*k+3}] offset:{32 + k*1024}")
        A(f"v_alignbit_b32 v{OD+4*k}, v{UR+4*k}, v{UR+8+k}, 16")
        for i in range(1, 4): A(f"v_alignbit_b32 v{OD+4*k+i}, v{UR+4*k+i}, v{UR+4*k+i-1}, 16")
        A(f"ds_write2_b32 v{20+k}, v{UR+4*k}, v{UR+4*k+1} offset0:0 offset1:1")
        A(f"ds_write2_b32 v{20+k}, v{UR+4*k+2}, v{UR+4*k+3} offset0:2 offset1:3")
        A(f"ds_write_b128 v{vUC}, v[{OD+4*k}:{OD+4*k+3}] offset:{CP + 32 + k*1024}")
        A(f"ds_write2_b32 v{22+k}, v{OD+4*k}, v{OD+4*k+1} offset0:0 offset1:1")
        A(f"ds_write2_b32 v{22+k}, v{OD+4*k+2}, v{OD+4*k+3} offset0:2 offset1:3")
    A.wait_all(vm=False)
    A("s_barrier")
    P.stamp("prep")
    if opt.stop == 6: A("s_endpgm")
    CA = 20; SET = [64, 128]; UE = 192
    def loads(rho):
        b = SET[rho & 1]; L = []
        for i in range(8):
            L.append(f"ds_read_b64_tr_b16 v[{b+4*i}:{b+4*i+1}], v{vU} offset:{64*rho + 512*i + 8}")
            L.append(f"ds_read_b64_tr_b16 v[{b+4*i+2}:{b+4*i+3}], v{vU} offset:{64*rho + 512*i}")
            L.append(f"ds_read_b128 v[{b+32+4*i}:{b+32+4*i+3}], v{vK} offset:{192 - 64*rho + 512*i}")
        return L
    for x in loads(0): A(x)
    A(f"s_lshl_b32 s{sT2}, s{sD}, 12\ns_lshl_b32 s{sT0}, s{sHW}, 11\ns_add_u32 s{sT2}, s{sT2}, s{sT0}\ns_add_u32 s{sT2}, s{sT2}, {WS_AT}")
    first = set()
    for rho in range(4):
        A("s_waitcnt lgkmcnt(0)")
        b = SET[rho & 1]
        nxt = loads(rho + 1) if rho < 3 else [f"ds_read_b64 v[{UE+2*k}:{UE+2*k+1}], v{vUE} offset:{32 + 512*k}" for k in range(4)]
        pairs = [(be, de) for be in range(8) for de in range(8 - be)]
        for (be, de) in pairs:
            a = CA + 4 * (be + de)
            cin = f"v[{a}:{a+3}]" if (be + de) in first else "0"
            first.add(be + de)
            A(f"v_mfma_f32_16x16x32_bf16 v[{a}:{a+3}], v[{b+4*be}:{b+4*be+3}], v[{b+32+4*de}:{b+32+4*de+3}], {cin}")
            if nxt: A(nxt.pop(0))
    P.stamp("conv")
    if opt.stop == 7: A("s_endpgm")
    A("s_waitcnt lgkmcnt(0)")
    for k in range(8): A(f"v_lshlrev_b32 v{96+2*k}, 16, v{UE+k}\nv_and_b32 v{97+2*k}, 0xffff0000, v{UE+k}")
    A(f"s_cmp_eq_u32 s{sHW}, 0\ns_cbranch_scc1 L_even2")
    for k in range(4): A(f"ds_write_b128 v{vXO}, v[{CA+4*k}:{CA+4*k+3}] offset:{k*1024}")
    for k in range(16): A(f"v_fma_f32 v{96+k}, s{sDS}, v{96+k}, v{CA+16+k}")
    A("s_branch L_join2")
    A.label("L_even2")
    for k in range(4): A(f"ds_write_b128 v{vXO}, v[{CA+16+4*k}:{CA+16+4*k+3}] offset:{k*1024}")
    for k in range(16): A(f"v_fma_f32 v{96+k}, s{sDS}, v{96+k}, v{CA+k}")
    A.label("L_join2")
    A("s_waitcnt lgkmcnt(0)\ns_barrier")
    for k in range(4): A(f"ds_read_b128 v[{64+4*k}:{67+4*k}], v{vXP} offset:{k*1024}")
    for k in range(4):
        A(f"s_waitcnt lgkmcnt({3-k})")
        for i in range(4): A(f"v_add_f32 v{96+4*k+i}, v{96+4*k+i}, v{64+4*k+i}")
        A(f"v_cvt_pk_bf16_f32 v{80+2*k}, v{96+4*k}, v{97+4*k}\nv_cvt_pk_bf16_f32 v{81+2*k}, v{98+4*k}, v{99+4*k}")
    for k in range(4): A(f"ds_write_b64 v{vST}, v[{80+2*k}:{81+2*k}] offset:{512*k}")
    for k in range(2): A(f"ds_read_b128 v[{88+4*k}:{91+4*k}], v{vXO} offset:{16384 + 1024*k}")
    for k in range(2):
        A(f"s_waitcnt lgkmcnt({1-k})")
        A(f"buffer_store_dwordx4 v[{88+4*k}:{91+4*k}], v{vL16}, s[{sWS}:{sWS+3}], s{sT2} offen offset:{1024*k} sc1")
    A("s_waitcnt vmcnt(0)\ns_barrier")
    A(f"buffer_store_dword v{vEp}, v{vF3}, s[{sWS}:{sWS+3}], 0 offen sc1")
    P.stamp("end")
    P.flush(4)
    A("s_endpgm")
    return P.names

def aux_role(A, opt):
    A.label("L_aux")
    A(f"s_lshl_b32 s{sT0}, s{sM2}, 2\ns_add_u32 s{sXb}, s{sT0}, s{sWAVE}\ns_mul_i32 s{sT2}, s{sXb}, 14336")
    A("v_lshlrev_b32 v1, 4, v0\nv_cmp_gt_u32 vcc, 56, v0\nv_cndmask_b32 v2, 2.0, v1, vcc")
    after_kernarg(A)
    srd(A, sX, 4, 1835008); srd(A, sW, 30, 896)
    GX, GW = 32, 28
    A.vmop(f"buffer_load_dwordx4 v[{GW}:{GW+3}], v2, s[{sW}:{sW+3}], 0 offen")
    xt = []
    for r_ in range(16):
        xt.append(A.vmop(f"buffer_load_dwordx4 v[{GX+4*r_}:{GX+4*r_+3}], v2, s[{sX}:{sX+3}], s{sT2} offen offset:{896*(r_%4)}"))
        if r_ % 4 == 3 and r_ < 15: A(f"s_add_u32 s{sT2}, s{sT2}, 3584")
    srd(A, sWS, 36, WS_SPAN); srd(A, sWd, 28, 1605632)
    A("s_waitcnt lgkmcnt(0)")
    epoch_finish(A)
    AC = 8
    for r_ in range(16):
        A.wait(vm=xt[r_])
        for k in range(4):
            A(f"v_dot2_f32_bf16 v{AC+r_}, v{GX+4*r_+k}, v{GW+k}, " + ("0" if k == 0 else f"v{AC+r_}"))
    halves = [h for h in (0, 1) if opt.pf >> h & 1]
    sPF, sPE, sBL = sXo, sWo, sDo
    A("s_nop 2")
    for m in ("row_shr:1 row_mask:0xf bank_mask:0xf bound_ctrl:0", "row_shr:2 row_mask:0xf bank_mask:0xf bound_ctrl:0", "row_shr:4 row_mask:0xf bank_mask:0xf bound_ctrl:0",
              "row_shr:8 row_mask:0xf bank_mask:0xf bound_ctrl:0", "row_bcast:15 row_mask:0xa bank_mask:0xf", "row_bcast:31 row_mask:0xc bank_mask:0xf"):
        for r_ in range(16): A(f"v_add_f32_dpp v{AC+r_}, v{AC+r_}, v{AC+r_} {m}")
    for r_ in range(16):
        A(f"v_readlane_b32 s{4+r_}, v{AC+r_}, 63")
    A("v_mov_b32 v3, 0")
    for r_ in range(16):
        A(f"v_writelane_b32 v3, s{4+r_}, {r_}")
    A("v_cvt_pk_bf16_f32 v4, v3, v3\nv_lshlrev_b32 v3, 16, v4")
    A(f"v_mul_f32 v3, {NLOG2E}, v3\nv_exp_f32 v3, v3\nv_add_f32 v3, 1.0, v3\nv_rcp_f32 v3, v3")
    A("v_cvt_pk_bf16_f32 v4, v3, v3\nv_lshlrev_b32 v3, 16, v4\nv_sub_f32 v5, 1.0, v3\nv_cvt_pk_bf16_f32 v4, v3, v5")
    A(f"v_mov_b32 v5, s{sEP}\nv_lshlrev_b32 v6, 3, v0\nv_cmp_gt_u32 vcc, 16, v0\nv_cndmask_b32 v6, 2.0, v6, vcc")
    A(f"s_lshl_b32 s{sT0}, s{sXb}, 7\ns_add_u32 s{sT0}, s{sT0}, {WS_GATE}")
    A(f"buffer_store_dwordx2 v[4:5], v6, s[{sWS}:{sWS+3}], s{sT0} offen sc1")
    for h in halves:
        lp = uid("pf")
        A(f"s_and_b32 s{sPF}, s{sSLOT}, 3\ns_lshl_b32 s{sPF}, s{sPF}, 2\ns_add_u32 s{sPF}, s{sPF}, s{sWAVE}\ns_lshl_b32 s{sPF}, s{sPF}, 10")
        A(f"s_lshl_b32 s{sT0}, s{sXC}, 1\ns_sub_u32 s{sT1}, s{sT0}, 14\ns_cselect_b32 s{sT0}, s{sT0}, s{sT1}\ns_mul_i32 s{sBL}, s{sT0}, 114688")
        A(f"s_mov_b32 s{sPE}, 0")
        A.label(lp)
        A(f"s_add_u32 s{sT2}, s{sBL}, s{sPF}")
        if h: A(f"s_add_u32 s{sT2}, s{sT2}, 57344")
        A("s_waitcnt vmcnt(9)")
        A(f"buffer_load_dwordx4 v[32:35], v1, s[{sWd}:{sWd+3}], s{sT2} offen")
        nx = uid("pn")
        A(f"s_add_u32 s{sPF}, s{sPF}, 16384\ns_cmp_lt_u32 s{sPF}, 57344\ns_cbranch_scc1 {nx}")
        A(f"s_sub_u32 s{sPF}, s{sPF}, 57344")
        wrap_add(A, sBL, 114688, 1605632)
        A.label(nx)
        A(f"s_add_u32 s{sPE}, s{sPE}, 1\ns_cmp_lt_u32 s{sPE}, 49\ns_cbranch_scc1 {lp}")
    A(f"s_cmp_lg_u32 s2, 224\ns_cbranch_scc1 L_end\ns_cmp_lg_u32 s{sWAVE}, 0\ns_cbranch_scc1 L_end")
    A(f"s_mov_b32 s{sSPIN}, 0")
    A("v_and_b32 v1, 15, v0\nv_min_u32 v1, 13, v1\nv_lshrrev_b32 v2, 4, v0\nv_lshlrev_b32 v2, 8, v2\nv_lshl_add_u32 v1, v1, 2, v2")
    A("v_lshlrev_b32 v2, 7, v0\nv_add_u32 v2, 4, v2")
    A("v_and_b32 v3, 31, v0\nv_lshrrev_b32 v4, 5, v0\nv_lshlrev_b32 v4, 12, v4\nv_lshl_add_u32 v3, v3, 2, v4")
    A.label("L_upd")
    regs = []
    A(f"s_mov_b32 s{sT0}, {WS_F2 + 224*128}")
    for k in range(4): A(f"buffer_load_dword v{40+k}, v1, s[{sWS}:{sWS+3}], s{sT0} offen offset:{1024*k} sc1"); regs.append(40 + k)
    for k in range(2): A(f"s_mov_b32 s{sT0}, {WS_GATE + 8192*k}\nbuffer_load_dword v{44+k}, v2, s[{sWS}:{sWS+3}], s{sT0} offen sc1"); regs.append(44 + k)
    if not (opt.nossm or opt.stop == 1):
        for k, base in enumerate((0, 8192, 16384, 20480)):
            A(f"s_mov_b32 s{sT0}, {WS_F1 + base}\nbuffer_load_dword v{46+k}, v3, s[{sWS}:{sWS+3}], s{sT0} offen sc1"); regs.append(46 + k)
    A("s_waitcnt vmcnt(0)")
    A("v_mov_b32 v5, 0")
    for k in regs: A(f"v_xor_b32 v6, s{sEP}, v{k}\nv_or_b32 v5, v5, v6")
    A("v_cmp_ne_u32 vcc, 0, v5")
    A("s_cbranch_vccz L_upd_ok")
    A(f"s_add_u32 s{sSPIN}, s{sSPIN}, 1\ns_cmp_ge_u32 s{sSPIN}, {SPIN_MAX}\ns_cbranch_scc1 L_upd_ok")
    A("s_sleep 8\ns_branch L_upd")
    A.label("L_upd_ok")
    A(f"v_mov_b32 v3, 2.0\nv_writelane_b32 v3, 0, 0\nv_mov_b32 v4, s{sEP}")
    A(f"buffer_store_dword v4, v3, s[{sWS}:{sWS+3}], 0 offen sc1")
    A("s_endpgm")

def build(opt):
    EMUL[0] = opt.emul
    A = Asm()
    A(f"s_cmp_ge_u32 s2, {NWG}\ns_cbranch_scc1 L_end")
    if opt.prof or opt.echo: A("s_memrealtime s[38:39]")
    A("s_load_dwordx16 s[4:19], s[0:1], 0\ns_load_dwordx16 s[20:35], s[0:1], 64\ns_load_dwordx2 s[36:37], s[0:1], 128")
    A(f"v_lshrrev_b32 v1, 6, v0\nv_and_b32 v0, 63, v0\nv_readfirstlane_b32 s{sWAVE}, v1")
    A(f"s_and_b32 s{sXC}, s2, 7\ns_bfe_u32 s{sSLOT}, s2, 0x50003")
    A(f"s_and_b32 s{sT0}, s{sXC}, 3\ns_lshl_b32 s{sT0}, s{sT0}, 3\ns_lshr_b32 s{sT1}, s{sXC}, 2\ns_lshl_b32 s{sT1}, s{sT1}, 2\ns_add_u32 s{sT0}, s{sT0}, s{sT1}")
    A(f"s_and_b32 s{sT1}, s{sSLOT}, 3\ns_add_u32 s{sM2}, s{sT0}, s{sT1}\ns_lshr_b32 s{sN2}, s{sSLOT}, 2\ns_lshl_b32 s{sLB}, s{sWAVE}, 12")
    A("s_cmp_ge_u32 s2, 256\ns_cbranch_scc1 L_ssm\ns_cmp_ge_u32 s2, 224\ns_cbranch_scc1 L_aux")
    names = {}
    names["gemm"] = gemm_role(A, opt)
    names["ssm"] = ssm_role(A, opt)
    aux_role(A, opt)
    A.label("L_end")
    A("s_endpgm")
    body, nn = hazard_pass(A.lines)
    ref = open(f"cdna_kernels/{NAME}.s.ref").read().split("\n")
    head = [l for l in ref if l.startswith(";") and "@launch" not in l]
    out = head + [f"; @launch grid=({NWG},1,1) block=(256,1,1) lds=81920",
                  '.amdgcn_target "amdgcn-amd-amdhsa--gfx950"', ".text", f".globl {NAME}_kernel", ".p2align 8",
                  f".type {NAME}_kernel,@function", f"{NAME}_kernel:"]
    out += [("    " + l if not l.endswith(":") else l) for l in body]
    out += ['.section .rodata,"a"', ".p2align 6", f".amdhsa_kernel {NAME}_kernel",
            "  .amdhsa_next_free_vgpr 256", "  .amdhsa_next_free_sgpr 102", "  .amdhsa_accum_offset 256",
            "  .amdhsa_group_segment_fixed_size 0", "  .amdhsa_kernarg_size 136", "  .amdhsa_user_sgpr_count 2",
            "  .amdhsa_user_sgpr_kernarg_segment_ptr 1", "  .amdhsa_system_sgpr_workgroup_id_x 1", ".end_amdhsa_kernel"]
    return "\n".join(out) + "\n", names, nn

if __name__ == "__main__":
    opt = Opt()
    path = sys.argv[1] if len(sys.argv) > 1 else f"cdna_kernels/{NAME}.s"
    for kv in sys.argv[2:]:
        k, val = kv.split("=")
        assert hasattr(opt, k), k
        setattr(opt, k, int(val) if val.lstrip("-").isdigit() else val)
    txt, names, nn = build(opt)
    open(path, "w").write(txt)
    import json
    open(path + ".names.json", "w").write(json.dumps(names))
    print("wrote", path, "lines", txt.count("\n"), "nops inserted", nn)
```
